```python
import torch

def _softmax(x, axis=-1):
    return torch.softmax(x, dim=axis)
def _gelu(x):
    return torch.nn.functional.gelu(x, approximate="tanh")
def _silu(x):
    return torch.nn.functional.silu(x)
def _sigmoid(x):
    return torch.sigmoid(x)
def _layernorm(x, axis=-1, eps=1e-5):
    m = x.mean(dim=axis, keepdim=True)
    v = x.var(dim=axis, keepdim=True, unbiased=False)
    return (x - m) / torch.sqrt(v + eps)
def _scatter_add(tgt, idx, src, axis=0):
    return tgt.clone().index_add_(axis, idx, src)
def _segment_sum(src, seg, n):
    out = torch.zeros((n,) + src.shape[1:], dtype=src.dtype)
    return out.index_add_(0, seg, src)
def _pad(x, pw):
    flat = tuple(v for pair in reversed(pw) for v in pair)
    return torch.nn.functional.pad(x, flat)

kernel_name = 'gated_mix__linear_kernel_hedgehog__geglu_ffn__prompt'

def setup_inputs():

    _w = (lambda a: (lambda t: t.to(torch.bfloat16) if t.is_floating_point() else t)(torch.as_tensor(a)))
    def _A_setup():
        B, S, D, H = 1, 2048, 576, 32
        Dh = D // H
        return {
            "x": _w((lambda *s: torch.randn(*s, dtype=torch.bfloat16) * 0.05)(B, S, D)),
            "wqkv": _w((lambda *s: torch.randn(*s, dtype=torch.bfloat16) * 0.8)(D, 3 * D)),
            "w_phi": _w((lambda *s: torch.randn(*s, dtype=torch.bfloat16) * 0.8)(H, Dh, Dh) * (Dh ** -0.5)),
            "wo": _w((lambda *s: torch.randn(*s, dtype=torch.bfloat16) * 0.05)(D, D)),
        }
    _A_in = _A_setup()

    def _B_setup():
        B, S, D, F = 1, 2048, 576, 4608
        return {
            "x": _w((lambda *s: torch.randn(*s, dtype=torch.bfloat16) * 0.05)(B, S, D)),
            "w_gate": _w((lambda *s: torch.randn(*s, dtype=torch.bfloat16) * 0.05)(D, F)),
            "w_up": _w((lambda *s: torch.randn(*s, dtype=torch.bfloat16) * 0.05)(D, F)),
            "w_down": _w((lambda *s: torch.randn(*s, dtype=torch.bfloat16) * 0.05)(F, D)),
        }
    _B_in = _B_setup()

    return {
        "A_x": _A_in["x"],
        "A_wqkv": _A_in["wqkv"],
        "A_w_phi": _A_in["w_phi"],
        "A_wo": _A_in["wo"],
        "B_x": _B_in["x"],
        "B_w_gate": _B_in["w_gate"],
        "B_w_up": _B_in["w_up"],
        "B_w_down": _B_in["w_down"],
        "gate_w": _w((lambda *s: torch.randn(*s, dtype=torch.bfloat16) * 0.05)(576) * 16.0),
    }

def reference(A_x, A_wqkv, A_w_phi, A_wo, B_x, B_w_gate, B_w_up, B_w_down, gate_w):
    def _A_ref(x, wqkv, w_phi, wo):
        B, S, D = x.shape
        H = 32; Dh = D // H
        qkv = (lambda x, *d: x.permute(*d))((x @ wqkv).reshape(B, S, 3, H, Dh), 2, 0, 3, 1, 4)
        q, k, v = qkv[0], qkv[1], qkv[2]
        pq = torch.einsum("bhsd,hdf->bhsf", q, w_phi)
        pk = torch.einsum("bhsd,hdf->bhsf", k, w_phi)
        phi_q = torch.concatenate([_softmax(pq, axis=-1), _softmax(-pq, axis=-1)], axis=-1)
        phi_k = torch.concatenate([_softmax(pk, axis=-1), _softmax(-pk, axis=-1)], axis=-1)
        kv = torch.einsum("bhsf,bhsd->bhfd", phi_k, v)
        z  = torch.einsum("bhsf->bhf", phi_k)
        num = torch.einsum("bhqf,bhfd->bhqd", phi_q, kv)
        den = torch.einsum("bhqf,bhf->bhq", phi_q, z)[..., None] + 1e-6
        o = num / den
        return (lambda x, *d: x.permute(*d))(o, 0, 2, 1, 3).reshape(B, S, D) @ wo

    def _B_ref(x, w_gate, w_up, w_down):
        return (_gelu(x @ w_gate) * (x @ w_up)) @ w_down

    x = A_x
    g = _sigmoid((x * gate_w).sum(-1, keepdims=True))
    a = _A_ref(x, A_wqkv, A_w_phi, A_wo)
    b = _B_ref(x, B_w_gate, B_w_up, B_w_down)
    return g * a + (1 - g) * b
```

```python
class B:
    def __init__(self):
        self.l = []
    def __call__(self, s):
        for x in s.split("\n"):
            x = x.strip()
            if x: self.l.append(x)
    def label(self, n): self.l.append(n + ":")
    def ext(self, lst):
        for x in lst: self(x)
    def text(self):
        import re
        out = []
        for x in self.l:
            m = re.search(r"offset:(-?\d+)", x)
            if m:
                o = int(m.group(1))
                if x.startswith("buffer_"): assert 0 <= o <= 4095, x
                elif x.startswith("ds_"): assert 0 <= o <= 65535, x
                elif x.startswith("global_"): assert -4096 <= o <= 4095, x
            out.append(x if x.endswith(":") or x.startswith(".") else "  " + x)
        return "\n".join(out) + "\n"

def v(n, c=1): return f"v{n}" if c == 1 else f"v[{n}:{n+c-1}]"
def a(n, c=1): return f"a{n}" if c == 1 else f"a[{n}:{n+c-1}]"
def s(n, c=1): return f"s{n}" if c == 1 else f"s[{n}:{n+c-1}]"

def srd(b, d, base, size):
    b(f"s_mov_b32 s{d}, s{base}")
    b(f"s_and_b32 s{d+1}, s{base+1}, 0xffff")
    b(f"s_mov_b32 s{d+2}, {size}")
    b(f"s_mov_b32 s{d+3}, 0x00020000")

def interleave(main, fill, per_gap):
    out = []
    k = 0
    for i, m in enumerate(main):
        out.append(m)
        budget = per_gap(i)
        while k < len(fill):
            f = fill[k]
            t, c = (f, 1) if isinstance(f, str) else f
            if c > budget and budget < per_gap(i): break
            out.append(t); budget -= c; k += 1
            if budget <= 0: break
    return out, fill[k:]

def kernel_header(name):
    return f".globl {name}\n.p2align 8\n.type {name},@function\n{name}:\n"

def kernel_desc(name, vgpr, agpr, sgpr=102):
    acc = (vgpr + 3) // 4 * 4
    nfv = acc + agpr if agpr else vgpr
    return f""".p2align 6
.amdhsa_kernel {name}
  .amdhsa_next_free_vgpr {nfv}
  .amdhsa_next_free_sgpr {sgpr}
  .amdhsa_accum_offset {acc}
  .amdhsa_group_segment_fixed_size 0
  .amdhsa_kernarg_size 96
  .amdhsa_user_sgpr_count 2
  .amdhsa_user_sgpr_kernarg_segment_ptr 1
  .amdhsa_system_sgpr_workgroup_id_x 1
  .amdhsa_float_denorm_mode_32 3
.end_amdhsa_kernel
"""
```

```python
from asmlib import *
from ffn_up import HB_STEPS, HB_R16, HB_SIZE, S_OFF, G1_OFF, P_OFF, VM, f2u
LOG2E = 1.4426950408889634
S_SIZE = 32*6144

WR = 0; WSLOT = 24576
WI = 73728
PK = 92160
VI = 112640
XS = 92160
NSL = 8

def scatter_table():
    T = []
    for e in range(648):
        hh, rem = divmod(e, 324); d, f = divmod(rem, 18)
        c = 18*hh + d; part, fp = divmod(f, 9); j, i = fp >> 2, fp & 3
        slot = 16*j + 4*(2*hh + part) + i
        T.append(c*96 + slot*2)
    T += [4600]*(768-648)
    return T

TILE_UNITS = [[0,1,2,3],[4,5,6,7],[8,20,21,22],[10,11,12,13],[14,15,16,17],[18,23,24,25],[26,27,28,28]]

def gen_attn(b, opt):
    sXs, sWs, sPh, sGw, sHB, sS = 8, 12, 16, 20, 24, 28
    sx, sj, smt, soc, sw = 32, 33, 34, 35, 36
    sXr = 38
    sWb = 40
    sM0 = 41; sT = 42; sT2 = 43; sP = 44; sXm0 = 45
    sAt = 46
    sHo = 47
    sDbg = 50
    sTab = 52
    sWd = 56
    L, G, M = 1, 2, 3
    t0, t1, t2, t3 = 4, 5, 6, 7
    vWd = 8
    vXd = 9
    vXl = 11
    vWa = 14
    vG = 28
    vWi = 30
    vPKw = 31
    vVw = 33
    vKA = 39; vKB = 40
    vAt = 41
    vCa = 42; vCc = 43
    vHo = 44
    vLo = 45
    vSc = 46
    vF = 52
    ACC = 108
    vW = 164
    def X(r, bb): return a((bb*2 + r)*4, 4)
    def PQ(p, r, i): return 144 + (p*2 + r)*10 + i
    def acc(tau, r): return ACC + (tau*2 + r)*4
    def stamp(lane):
        if opt.get("stamps"):
            b("s_memtime s[92:93]"); b("s_waitcnt lgkmcnt(0)"); b(f"v_writelane_b32 v255, s92, {lane}")

    b("s_load_dwordx4 s[60:63], s[0:1], 0")
    b("s_load_dwordx2 s[64:65], s[0:1], 16")
    b("s_load_dwordx2 s[66:67], s[0:1], 64")
    b(f"s_load_dwordx4 s[68:71], s[0:1], 80")
    b(f"s_getpc_b64 s[{sTab}:{sTab+1}]")
    b.label("L_at_pc")
    b(f"s_add_u32 s{sTab}, s{sTab}, L_at_table-L_at_pc")
    b(f"s_addc_u32 s{sTab+1}, s{sTab+1}, 0")
    b(f"s_and_b32 s{sx}, s2, 7")
    b(f"s_lshr_b32 s{sj}, s2, 3")
    b(f"s_sub_u32 s{sj}, s{sj}, 24")
    b(f"s_and_b32 s{soc}, s{sx}, 3")
    b(f"s_lshr_b32 s{smt}, s{sx}, 2")
    b(f"s_lshl_b32 s{smt}, s{smt}, 3")
    b(f"s_add_u32 s{smt}, s{smt}, s{sj}")
    b(f"v_lshrrev_b32 v{t0}, 6, v0")
    b(f"v_and_b32 v{L}, 63, v0")
    b(f"v_readfirstlane_b32 s{sw}, v{t0}")
    b(f"v_lshrrev_b32 v{G}, 4, v{L}")
    b(f"v_and_b32 v{M}, 15, v{L}")
    b(f"v_lshlrev_b32 v{vHo}, 4, v{L}")
    for o in range(2):
        b(f"v_lshrrev_b32 v{t0}, 3, v{L}")
        b(f"v_add_u32 v{t0}, {8*o}, v{t0}")
        b(f"v_mul_u32_u24 v{vXd+o}, 1152, v{t0}")
        b(f"v_and_b32 v{t0}, 7, v{L}")
        b(f"v_add_u32 v{t1}, {4*o}, v{G}")
        b(f"v_xor_b32 v{t0}, v{t0}, v{t1}")
        b(f"v_lshl_add_u32 v{vXd+o}, v{t0}, 4, v{vXd+o}")
    b(f"s_lshl_b32 s{sXm0}, s{sw}, 14")
    b(f"s_add_u32 s{sXm0}, s{sXm0}, {XS}")
    for q in range(2):
        b(f"v_lshrrev_b32 v{t0}, 1, v{M}")
        b(f"v_add_u32 v{t1}, {4*q}, v{G}")
        b(f"v_xor_b32 v{t0}, v{t0}, v{t1}")
        b(f"v_lshlrev_b32 v{t0}, 4, v{t0}")
        b(f"v_lshl_add_u32 v{vXl+q}, v{M}, 7, v{t0}")
        b(f"v_add_u32 v{vXl+q}, s{sXm0}, v{vXl+q}")
    b(f"s_lshr_b32 s{sT}, s{sw}, 1")
    b(f"s_lshl_b32 s{sT}, s{sT}, 2")
    b(f"v_or_b32 v{t0}, s{sT}, v{G}")
    b(f"v_lshlrev_b32 v{t0}, 1, v{t0}")
    b(f"v_xor_b32 v{t0}, v{t0}, v{M}")
    b(f"v_mul_u32_u24 v{t1}, 52, v{t0}")
    b(f"v_lshrrev_b32 v{t1}, 8, v{t1}")
    b(f"v_mul_u32_u24 v{t2}, 5, v{t1}")
    b(f"v_sub_u32 v{t2}, v{t0}, v{t2}")
    b(f"v_mul_u32_u24 v{vWd}, 3456, v{G}")
    b(f"v_mul_u32_u24 v{t1}, 1152, v{t1}")
    b(f"v_add_u32 v{vWd}, v{vWd}, v{t1}")
    b(f"v_lshl_add_u32 v{vWd}, v{t2}, 4, v{vWd}")
    b(f"v_bfe_u32 v{t0}, v{L}, 2, 2")
    b(f"v_and_b32 v{t1}, 1, v{G}")
    b(f"v_lshl_add_u32 v{t1}, v{t1}, 2, v{t0}")
    b(f"v_lshlrev_b32 v{t1}, 1, v{t1}")
    b(f"v_lshl_add_u32 v{t0}, v{G}, 3, v{t0}")
    b(f"v_lshlrev_b32 v{t0}, 8, v{t0}")
    b(f"v_and_b32 v{t2}, 3, v{L}")
    b(f"v_lshlrev_b32 v{t2}, 3, v{t2}")
    for tau in range(7):
        u = TILE_UNITS[tau]
        pk = u[0] | (u[1] << 8) | (u[2] << 16) | (u[3] << 24)
        b(f"v_mov_b32 v{t3}, 0x{pk:08x}")
        b(f"v_lshrrev_b32 v{t3}, v{t2}, v{t3}")
        b(f"v_and_b32 v{t3}, 0xff, v{t3}")
        b(f"v_lshrrev_b32 v{vWa+tau}, 1, v{t3}")
        b(f"v_xor_b32 v{vWa+tau}, v{vWa+tau}, v{t1}")
        b(f"v_lshl_add_u32 v{vWa+tau}, v{vWa+tau}, 4, v{t0}")
        b(f"v_and_b32 v{t3}, 1, v{t3}")
        b(f"v_lshl_add_u32 v{vWa+tau}, v{t3}, 3, v{vWa+tau}")
        b(f"v_add_u32 v{vWa+7+tau}, {2*WSLOT}, v{vWa+tau}")
    b(f"v_bfe_u32 v{t0}, v{L}, 2, 2")
    b(f"v_lshl_add_u32 v{t0}, v{G}, 2, v{t0}")
    b(f"v_and_b32 v{t2}, 3, v{L}")
    b(f"v_mul_u32_u24 v{vWi}, 96, v{t0}")
    b(f"v_lshl_add_u32 v{vWi}, v{t2}, 3, v{vWi}")
    b(f"v_add_u32 v{vWi}, {WI}, v{vWi}")
    b(f"s_lshr_b32 s{sT}, s{sw}, 1")
    b(f"s_and_b32 s{sT2}, s{sw}, 1")
    b(f"s_lshl_b32 s72, s{sT}, 2")
    b(f"v_add_u32 v{t1}, s72, v{t2}")
    b(f"s_add_u32 s72, s72, 4")
    b(f"v_mov_b32 v{t3}, 9")
    b(f"v_mov_b32 v{vKB}, s72")
    b(f"v_cmp_eq_u32 vcc, 0, v{t2}")
    b("s_nop 1")
    b(f"v_cndmask_b32 v{t3}, v{t3}, v{vKB}, vcc")
    b(f"s_cmp_eq_u32 s{sT2}, 0")
    b(f"s_cselect_b64 vcc, -1, 0")
    b("s_nop 1")
    b(f"v_cndmask_b32 v{t1}, v{t3}, v{t1}, vcc")
    b(f"v_mul_u32_u24 v{vKA}, 96, v{t0}")
    b(f"v_lshl_add_u32 v{vKA}, v{t1}, 3, v{vKA}")
    b(f"v_add_u32 v{vKA}, {VI}, v{vKA}")
    b(f"s_mul_i32 s72, s{sT}, 80")
    b(f"v_mul_u32_u24 v{vKB}, 160, v{t0}")
    b(f"v_lshl_add_u32 v{vKB}, v{t2}, 3, v{vKB}")
    b(f"v_add_u32 v{vKB}, s72, v{vKB}")
    b(f"v_add_u32 v{vKB}, {PK}, v{vKB}")
    b(f"v_mul_u32_u24 v{vAt}, 768, v{G}")
    b(f"v_lshl_add_u32 v{vAt}, v{M}, 2, v{vAt}")
    b(f"s_mul_i32 s73, s{sT}, 6144")
    b(f"s_mul_i32 s72, s{sT2}, 3072")
    b(f"s_add_u32 s73, s73, s72")
    b(f"s_lshl_b32 s72, s{sw}, 5")
    b(f"v_add_u32 v{t0}, s72, v{M}")
    for r in range(2):
        b(f"v_add_u32 v{t1}, {16*r}, v{t0}")
        b(f"v_mul_u32_u24 v{vPKw+r}, 160, v{t1}")
        b(f"v_mul_u32_u24 v{t2}, 40, v{G}")
        b(f"v_add_u32 v{vPKw+r}, v{vPKw+r}, v{t2}")
        b(f"v_add_u32 v{vPKw+r}, {PK}, v{vPKw+r}")
        b(f"v_mul_u32_u24 v{t2}, 96, v{t1}")
        b(f"v_add_u32 v{t2}, {VI}, v{t2}")
        for k, (add, cmpv) in enumerate(((-1, 0), (2, 0), (6, 3))):
            b(f"v_add_u32 v{t3}, {add}, v{G}")
            b(f"v_cmp_eq_u32 vcc, {cmpv}, v{G}")
            b(f"v_mov_b32 v{vVw+r*3+k}, 10")
            b("s_nop 0")
            b(f"v_cndmask_b32 v{t3}, v{t3}, v{vVw+r*3+k}, vcc")
            b(f"v_lshl_add_u32 v{vVw+r*3+k}, v{t3}, 3, v{t2}")
    b(f"v_lshrrev_b32 v{t0}, 1, v{G}")
    b(f"v_and_b32 v{t1}, 1, v{G}")
    b(f"v_lshl_add_u32 v{t2}, v{t0}, 1, v{M}")
    b(f"v_mul_u32_u24 v{vCa}, 192, v{t2}")
    b(f"v_mul_u32_u24 v{t2}, 6144, v{t0}")
    b(f"v_add_u32 v{vCa}, v{vCa}, v{t2}")
    b(f"v_mul_u32_u24 v{t2}, 80, v{t1}")
    b(f"v_add_u32 v{vCa}, v{vCa}, v{t2}")
    b(f"v_and_b32 v{t2}, 3, v{M}")
    b(f"v_lshrrev_b32 v{t3}, 2, v{M}")
    b(f"v_cmp_gt_u32 vcc, 2, v{t2}")
    b("s_nop 1")
    b(f"v_cndmask_b32 v{vCc}, v{t3}, v{t2}, vcc")
    b(f"v_lshl_add_u32 v{t3}, v{t3}, 1, v{t2}")
    b(f"v_add_u32 v{t3}, 14, v{t3}")
    b(f"v_mov_b32 v{t2}, 20")
    b(f"v_cndmask_b32 v{t3}, v{t3}, v{t2}, vcc")
    b(f"v_cmp_eq_u32 s[74:75], v{vCc}, v{t0}")
    b(f"v_min_u32 v{vCc}, 1, v{vCc}")
    b(f"v_mul_u32_u24 v{vCc}, 6144, v{vCc}")
    b(f"v_mul_u32_u24 v{t3}, 192, v{t3}")
    b(f"v_add_u32 v{vCc}, v{vCc}, v{t3}")
    b(f"v_mul_u32_u24 v{t2}, 80, v{t1}")
    b(f"v_add_u32 v{vCc}, v{vCc}, v{t2}")
    b(f"v_cmp_gt_u32 s[76:77], 2, v{G}")
    b(f"v_cmp_eq_u32 s[78:79], 1, v{G}")
    b(f"v_lshlrev_b32 v{t0}, 1, v0")
    for n in range(3):
        b(f"global_load_ushort v{vSc+n}, v{t0}, s[{sTab}:{sTab+1}] offset:{512*n}")
    b("s_waitcnt lgkmcnt(0)")
    srd(b, sXs, 60, 2359296)
    srd(b, sWs, 62, 1990656)
    srd(b, sPh, 64, 20736)
    srd(b, sGw, 66, 1152)
    srd(b, sHB, 70, HB_SIZE)
    b(f"s_add_u32 s{sS}, s70, {S_OFF}")
    b(f"s_addc_u32 s{sS+1}, s71, 0")
    b(f"s_and_b32 s{sS+1}, s{sS+1}, 0xffff")
    b(f"s_mov_b32 s{sS+2}, {S_SIZE}")
    b(f"s_mov_b32 s{sS+3}, 0x00020000")
    b(f"s_mov_b32 s{sDbg}, s68"); b(f"s_mov_b32 s{sDbg+1}, s69")
    b(f"s_lshl_b32 s{sT}, s{smt}, 2")
    b(f"s_add_u32 s{sT}, s{sT}, s{sw}")
    b(f"s_mul_i32 s{sXr}, s{sT}, {32*1152}")
    b(f"s_add_u32 s{sXr+1}, s{sXr}, {16*1152}")
    b(f"s_mul_i32 s{sHo}, s{sT}, {2*HB_R16}")
    b(f"s_add_u32 s{sHo+1}, s{sHo}, {HB_R16}")
    b(f"s_mul_i32 s{sWb}, s{sw}, {4*3456}")
    b(f"s_mul_i32 s{sT}, s{soc}, 288")
    b(f"s_add_u32 s{sWb}, s{sWb}, s{sT}")
    b(f"s_lshl_b32 s{sM0}, s{sw}, 10")

    b(f"s_lshl_b32 s{sT}, s{smt}, 2")
    b(f"s_add_u32 s{sT}, s{sT}, s{soc}")
    b(f"s_mul_i32 s{sT}, s{sT}, 3072")
    b(f"v_lshlrev_b32 v{t0}, 4, v0")
    b(f"v_mov_b32 v{vW}, 0"); b(f"v_mov_b32 v{vW+1}, 0"); b(f"v_mov_b32 v{vW+2}, 0"); b(f"v_mov_b32 v{vW+3}, 0")
    b(f"v_mov_b32 v{t1}, 0x7f000000")
    b(f"v_cmp_gt_u32 vcc, 192, v0")
    b("s_nop 1")
    b(f"v_cndmask_b32 v{t0}, v{t1}, v{t0}, vcc")
    b(f"buffer_store_dwordx4 {v(vW,4)}, v{t0}, s[{sS}:{sS+3}], s{sT} offen sc0 sc1")

    def wdma(sig, kk):
        return [f"s_add_u32 m0, s{sM0}, {WR + (sig % 3)*WSLOT + kk*4096}",
                f"s_add_u32 s{sT}, s{sWd}, {kk*16*3456}",
                f"buffer_load_dwordx4 v{vWd}, s[{sWs}:{sWs+3}], s{sT} offen lds"]
    def xdma(jx):
        kap, r = jx >> 1, jx & 1
        sl = jx % NSL
        return [f"s_add_u32 m0, s{sXm0}, {sl*2048}",
                f"s_add_u32 s{sT}, s{sXr+r}, {kap*128}",
                f"buffer_load_dwordx4 v{vXd}, s[{sXs}:{sXs+3}], s{sT} offen lds",
                f"s_add_u32 m0, s{sXm0}, {sl*2048+1024}",
                "s_nop 0",
                f"buffer_load_dwordx4 v{vXd+1}, s[{sXs}:{sXs+3}], s{sT} offen lds"]
    def xread(jx):
        kap, r = jx >> 1, jx & 1
        sl = jx % NSL
        return [f"ds_read_b128 {X(r, 2*kap+q)}, v{vXl+q} offset:{sl*2048}" for q in range(2)]

    vm = VM(); vm.issue()
    xid = {}
    for jx in range(NSL):
        b.ext(xdma(jx)); vm.issue(); xid[jx] = vm.issue()
    b(f"s_mov_b32 s{sWd}, s{sWb}")
    for sig in range(2):
        for kk in range(6): b.ext(wdma(sig, kk)); vm.issue()
        b(f"s_add_u32 s{sWd}, s{sWd}, {96*3456}")
    b(f"v_lshlrev_b32 v{t0}, 4, v{G}")
    for bb in range(18):
        b(f"buffer_load_dwordx4 {v(vW+4*bb,4)}, v{t0}, s[{sGw}:{sGw+3}], 0 offen offset:{64*bb}"); gate_last = vm.issue()
    b(f"s_mul_i32 s{sT}, s{soc}, {2592*2}")
    b(f"v_lshlrev_b32 v{t0}, 1, v0")
    b(f"v_mov_b32 v{t1}, 0x7f000000")
    b(f"v_cmp_gt_u32 vcc, {648-512}, v0")
    b(f"v_add_u32 v{t2}, 1024, v{t0}")
    b(f"v_cndmask_b32 v{t2}, v{t1}, v{t2}, vcc")
    for p in range(4):
        if p: b(f"s_add_u32 s{sT}, s{sT}, 1296")
        for n in range(3):
            if n < 2:
                b(f"buffer_load_ushort v{vF+p*3+n}, v{t0}, s[{sPh}:{sPh+3}], s{sT} offen offset:{n*512}")
            else:
                b(f"buffer_load_ushort v{vF+p*3+n}, v{t2}, s[{sPh}:{sPh+3}], s{sT} offen")
            phi_last = vm.issue()
    b(f"v_mul_u32_u24 v{t0}, 72, v0")
    b(f"v_add_u32 v{t0}, {WI}, v{t0}")
    for i in range(4): b(f"v_mov_b32 v{vF+16+i}, 0")
    for i in range(9): b(f"ds_write_b64 v{t0}, {v(vF+16,2)} offset:{8*i}")
    for jx in range(18):
        b(f"s_waitcnt vmcnt({vm.wait_for(xid[jx])})")
        b.ext(xread(jx))
        if jx + NSL < 18:
            b("s_waitcnt lgkmcnt(0)")
            b.ext(xdma(jx + NSL)); vm.issue(); xid[jx+NSL] = vm.issue()
    stamp(1)
    b("s_waitcnt vmcnt(0) lgkmcnt(0)")
    b("s_barrier")
    b(f"s_cmp_eq_u32 s{sw}, 0")
    b("s_cbranch_scc0 L_at_nosig0")
    b(f"v_mov_b32 v{t0}, 0"); b(f"v_mov_b32 v{t1}, 1")
    b("s_mov_b64 s[80:81], exec")
    b("s_mov_b64 exec, 1")
    b(f"global_atomic_add v{t0}, v{t1}, s[{sDbg}:{sDbg+1}]")
    b("s_mov_b64 exec, s[80:81]")
    b.label("L_at_nosig0")
    for p in range(4):
        for n in range(3):
            b(f"v_add_u32 v{t0}, {WI + p*4608}, v{vSc+n}")
            b(f"ds_write_b16 v{t0}, v{vF+p*3+n}")
    b(f"v_mul_u32_u24 v{t0}, 96, v0")
    b(f"v_add_u32 v{t0}, {VI+72}, v{t0}")
    b(f"v_mov_b32 v{vF+16}, 0x3f80")
    b(f"v_cmp_gt_u32 vcc, 128, v0")
    b("s_and_saveexec_b64 s[80:81], vcc")
    b("s_cbranch_execz L_at_noones")
    b(f"ds_write_b64 v{t0}, {v(vF+16,2)}")
    b.label("L_at_noones")
    b("s_mov_b64 exec, s[80:81]")
    for r in range(2):
        for bb in range(18):
            C = "0" if bb == 0 else v(acc(0,r),4)
            b(f"v_mfma_f32_16x16x32_bf16 {v(acc(0,r),4)}, {v(vW+4*bb,4)}, {X(r,bb)}, {C}")
    b("s_nop 7")
    for r in range(2):
        b(f"v_mul_f32 v{vG+r}, 0x{f2u(-LOG2E):08x}, v{acc(0,r)}")
        b(f"v_exp_f32 v{vG+r}, v{vG+r}")
        b("s_nop 0")
        b(f"v_add_f32 v{vG+r}, 1.0, v{vG+r}")
        b(f"v_rcp_f32 v{vG+r}, v{vG+r}")
    b(f"s_cmp_eq_u32 s{soc}, 0")
    b("s_cbranch_scc0 L_at_nog1")
    b(f"s_lshl_b32 s{sT}, s{smt}, 2")
    b(f"s_add_u32 s{sT}, s{sT}, s{sw}")
    b(f"s_lshl_b32 s{sT}, s{sT}, 7")
    b(f"v_lshlrev_b32 v{t0}, 2, v{M}")
    b(f"v_add_u32 v{t0}, s{sT}, v{t0}")
    b(f"v_add_u32 v{t0}, {G1_OFF}, v{t0}")
    b(f"v_cmp_gt_u32 vcc, 16, v{L}")
    b("s_and_saveexec_b64 s[80:81], vcc")
    b("s_cbranch_execz L_at_nog1b")
    for r in range(2):
        b(f"v_sub_f32 v{t1+r}, 1.0, v{vG+r}")
        b(f"global_store_dword v{t0}, v{t1+r}, s[70:71] offset:{64*r}")
    b.label("L_at_nog1b")
    b("s_mov_b64 exec, s[80:81]")
    b.label("L_at_nog1")
    b("s_waitcnt lgkmcnt(0)")
    b("s_barrier")
    stamp(2)

    def rd(tau, bb, ring):
        sig, q = bb // 3, bb % 3
        sl = sig % 3
        ad = (vWa + tau) if sl < 2 else (vWa + 7 + tau)
        off = (sl*WSLOT if sl < 2 else 0) + q*8192
        d = vF + ring*28 + tau*4
        return [f"ds_read_b64_tr_b16 {v(d,2)}, v{ad} offset:{off}",
                f"ds_read_b64_tr_b16 {v(d+2,2)}, v{ad} offset:{off+1024}"]
    for tau in range(7): b.ext(rd(tau, 0, 0))
    b(f"s_mov_b32 s{sP}, 0")
    b(".p2align 6")
    b.label("L_at_pair")
    vm_n = 0
    for bb in range(18):
        sig, q = bb // 3, bb % 3
        ring = bb & 1
        if q == 2:
            b(f"s_waitcnt vmcnt({18 if sig == 0 else 6}) lgkmcnt(0)")
            b("s_barrier")
        else:
            b("s_waitcnt lgkmcnt(0)")
        fill = []
        nb = (bb + 1) % 18
        for tau in range(7): fill += rd(tau, nb, 1 - ring)
        dm = []
        if q < 2:
            tgt = sig + 2
            if tgt == 6: dm.append(f"s_add_u32 s{sWd}, s{sWb}, 72") if q == 0 else None
            for kk in range(3*q, 3*q + 3): dm += wdma(tgt % 6, kk)
            if q == 1:
                dm.append(f"s_add_u32 s{sWd}, s{sWd}, {96*3456}")
        fill += dm
        main = []
        for tau in range(7):
            for r in range(2):
                C = "0" if bb == 0 else v(acc(tau,r),4)
                main.append(f"v_mfma_f32_16x16x32_bf16 {v(acc(tau,r),4)}, {v(vF+ring*28+tau*4,4)}, {X(r,bb)}, {C}")
        per = (len(fill) + 13)//14
        k = 0
        for m_ in main:
            b(m_)
            for _ in range(per):
                if k < len(fill): b(fill[k]); k += 1
        assert k == len(fill)
    b(f"s_add_u32 s{sWb}, s{sWb}, 72")
    stamp(3)
    vPk = vW
    def pkq(r): return vPk + r*14
    vA0 = 192
    vA1 = 204
    vPt = 210
    vE = 222
    vR = 240
    u0, u1, u2, u3 = 250, 251, 252, 253
    b(f"s_mul_i32 s{sT}, s{sP}, 4608")
    b(f"v_add_u32 v{u0}, s{sT}, v{vWi}")
    for j in range(3):
        b(f"ds_read_b64_tr_b16 {v(vA0+4*j,2)}, v{u0} offset:{32*j}")
        b(f"ds_read_b64_tr_b16 {v(vA0+4*j+2,2)}, v{u0} offset:{32*j + 16*96}")
        b(f"ds_read_b64_tr_b16 {v(vA1+2*j,2)}, v{u0} offset:{32*j + 32*96}")
    b("s_nop 4")
    for r in range(2):
        o = pkq(r)
        for k, tau in enumerate((0, 1, 2, 3, 4, 5, 6)):
            A_ = acc(tau, r)
            b(f"v_cvt_pk_bf16_f32 v{o+2*k}, v{A_}, v{A_+1}")
            b(f"v_cvt_pk_bf16_f32 v{o+2*k+1}, v{A_+2}, v{A_+3}")
    for r in range(2):
        o = pkq(r)
        b(f"ds_write_b64 v{vVw+r*3+0}, {v(o+4,2)}")
        b(f"ds_write_b64 v{vVw+r*3+1}, {v(o+10,2)}")
        b(f"ds_write_b64 v{vVw+r*3+2}, {v(o+12,2)}")
    b("s_waitcnt lgkmcnt(6)")
    def softmax(r, isk):
        o = pkq(r) + (6 if isk else 0)
        for j in range(3):
            b(f"v_mfma_f32_16x16x32_bf16 {v(vPt+4*j,4)}, {v(vA0+4*j,4)}, {v(o,4)}, 0")
        b("s_nop 3")
        for j in range(3):
            b(f"v_mfma_f32_16x16x16_bf16 {v(vPt+4*j,4)}, {v(vA1+2*j,2)}, {v(o+4,2)}, {v(vPt+4*j,4)}")
        b("s_nop 7")
        p_ = [vPt+0, vPt+1, vPt+2, vPt+3, vPt+4, vPt+5, vPt+6, vPt+7, vPt+8]
        b(f"v_max3_f32 v{u0}, v{p_[0]}, v{p_[1]}, v{p_[2]}")
        b(f"v_max3_f32 v{u1}, -v{p_[0]}, -v{p_[1]}, -v{p_[2]}")
        for k in (3, 5, 7):
            b(f"v_max3_f32 v{u0}, v{u0}, v{p_[k]}, v{p_[k+1]}")
            b(f"v_max3_f32 v{u1}, v{u1}, -v{p_[k]}, -v{p_[k+1]}")
        b("s_nop 1")
        b(f"v_permlane16_swap_b32 v{u0}, v{u1}")
        b("s_nop 1")
        b(f"v_max_f32 v{u0}, v{u0}, v{u1}")
        b(f"v_mov_b32 v{u1}, v{u0}")
        b("s_nop 1")
        b(f"v_permlane16_swap_b32 v{u0}, v{u1}")
        b("s_nop 1")
        b(f"v_mul_f32 v{u0}, 0x{f2u(-LOG2E):08x}, v{u0}")
        b(f"v_mul_f32 v{u1}, 0x{f2u(-LOG2E):08x}, v{u1}")
        b(f"v_mov_b32 v{u2}, 0x{f2u(LOG2E):08x}")
        for i in range(9):
            b(f"v_fma_f32 v{vE+i}, v{p_[i]}, v{u2}, v{u0}")
            b(f"v_fma_f32 v{vE+9+i}, -v{p_[i]}, v{u2}, v{u1}")
        for i in range(18): b(f"v_exp_f32 v{vE+i}, v{vE+i}")
        b("s_nop 0")
        b(f"v_add_f32 v{u0}, v{vE}, v{vE+1}")
        b(f"v_add_f32 v{u1}, v{vE+9}, v{vE+10}")
        for i in range(2, 9):
            b(f"v_add_f32 v{u0}, v{u0}, v{vE+i}")
            b(f"v_add_f32 v{u1}, v{u1}, v{vE+9+i}")
        b("s_nop 1")
        b(f"v_permlane16_swap_b32 v{u0}, v{u1}")
        b("s_nop 1")
        b(f"v_add_f32 v{u0}, v{u0}, v{u1}")
        b(f"v_mov_b32 v{u1}, v{u0}")
        b("s_nop 1")
        b(f"v_permlane16_swap_b32 v{u0}, v{u1}")
        b("s_nop 1")
        b(f"v_rcp_f32 v{u0}, v{u0}")
        b(f"v_rcp_f32 v{u1}, v{u1}")
        b("s_nop 0")
        for i in range(9):
            b(f"v_mul_f32 v{vE+i}, v{vE+i}, v{u0}")
            b(f"v_mul_f32 v{vE+9+i}, v{vE+9+i}, v{u1}")
        for i in range(9):
            b(f"v_cvt_pk_bf16_f32 v{vR+i}, v{vE+2*i}, v{vE+2*i+1}")
        b(f"v_mov_b32 v{vR+9}, 0")
    for r in range(2):
        softmax(r, True)
        for i in range(5):
            b(f"ds_write_b64 v{vPKw+r}, {v(vR+2*i,2)} offset:{8*i}")
    for r in range(2):
        softmax(r, False)
        for p in range(4):
            b(f"s_cmp_eq_u32 s{sP}, {p}")
            b(f"s_cbranch_scc0 L_at_sv{r}_{p}")
            for i in range(10): b(f"v_accvgpr_write_b32 a{PQ(p,r,i)}, v{vR+i}")
            b.label(f"L_at_sv{r}_{p}")
    b(f"s_cmp_eq_u32 s{sP}, 0")
    b("s_cbranch_scc0 L_at_nopoll0")
    b(f"s_cmp_eq_u32 s{sw}, 0")
    b("s_cbranch_scc0 L_at_nopoll0")
    b(f"v_mov_b32 v{u0}, 0")
    b.label("L_at_poll0")
    b(f"global_load_dword v{u1}, v{u0}, s[{sDbg}:{sDbg+1}] sc1")
    b("s_waitcnt vmcnt(0)")
    b(f"v_readfirstlane_b32 s{sT}, v{u1}")
    b(f"s_cmp_ge_u32 s{sT}, 64")
    b("s_cbranch_scc1 L_at_nopoll0")
    b("s_sleep 2")
    b("s_branch L_at_poll0")
    b.label("L_at_nopoll0")
    b("s_waitcnt lgkmcnt(0)")
    b("s_barrier")
    vKa = 164
    vKb = 180
    vKd = 228
    for s_ in range(4):
        b(f"ds_read_b64_tr_b16 {v(vKa+4*s_,2)}, v{vKA} offset:{s_*3072}")
        b(f"ds_read_b64_tr_b16 {v(vKa+4*s_+2,2)}, v{vKA} offset:{s_*3072+1536}")
    for s_ in range(4):
        b("s_waitcnt lgkmcnt(7)")
        for ph in range(3):
            d = vKb + (s_*3+ph)*4
            b(f"ds_read_b64_tr_b16 {v(d,2)}, v{vKB} offset:{s_*5120 + ph*32}")
            b(f"ds_read_b64_tr_b16 {v(d+2,2)}, v{vKB} offset:{s_*5120 + 2560 + ph*32}")
    b("s_waitcnt lgkmcnt(0)")
    b("s_barrier")
    for s_ in range(4):
        for ph in range(3):
            C = "0" if s_ == 0 else v(vKd+4*ph,4)
            b(f"v_mfma_f32_16x16x32_bf16 {v(vKd+4*ph,4)}, {v(vKa+4*s_,4)}, {v(vKb+(s_*3+ph)*4,4)}, {C}")
    b(f"s_lshl_b32 s{sT}, s{soc}, 2")
    b(f"s_add_u32 s{sT}, s{sT}, s{sP}")
    b(f"s_mul_i32 s{sT}, s{sT}, 12288")
    b(f"s_add_u32 s{sAt}, s{sT}, s73")
    b("s_nop 7")
    for ph in range(3):
        for i in range(4):
            b(f"buffer_atomic_add_f32 v{vKd+4*ph+i}, v{vAt}, s[{sS}:{sS+3}], s{sAt} offen offset:{i*192 + ph*64}")
    stamp(4)
    b(f"s_add_u32 s{sP}, s{sP}, 1")
    b(f"s_cmp_lt_u32 s{sP}, 4")
    b("s_cbranch_scc1 L_at_pair")
    b("s_waitcnt vmcnt(0)")
    b("s_barrier")
    b(f"s_cmp_eq_u32 s{sw}, 0")
    b("s_cbranch_scc0 L_at_nopoll1")
    b(f"v_mov_b32 v{u0}, 0"); b(f"v_mov_b32 v{u1}, 1")
    b("s_mov_b64 s[80:81], exec")
    b("s_mov_b64 exec, 1")
    b(f"global_atomic_add v{u0}, v{u1}, s[{sDbg}:{sDbg+1}] offset:64")
    b("s_mov_b64 exec, s[80:81]")
    b.label("L_at_poll1")
    b(f"global_load_dword v{u1}, v{u0}, s[{sDbg}:{sDbg+1}] offset:64 sc1")
    b("s_waitcnt vmcnt(0)")
    b(f"v_readfirstlane_b32 s{sT}, v{u1}")
    b(f"s_cmp_ge_u32 s{sT}, 64")
    b("s_cbranch_scc1 L_at_nopoll1")
    b("s_sleep 2")
    b("s_branch L_at_poll1")
    b.label("L_at_nopoll1")
    b("s_barrier")
    stamp(5)
    b(f"s_mov_b32 s{sP}, 0")
    b.label("L_at_c")
    vSa = 164
    vSc2 = 188
    vFa = 52
    vBq = 88
    vD = 112
    b(f"s_lshl_b32 s{sT}, s{soc}, 2")
    b(f"s_add_u32 s{sT}, s{sT}, s{sP}")
    b(f"s_mul_i32 s{sT2}, s{sT}, 12288")
    for s_ in range(3):
        for h in range(2):
            b(f"buffer_load_dwordx4 {v(vSa+8*s_+4*h,4)}, v{vCa}, s[{sS}:{sS+3}], s{sT2} offen offset:{32*s_+16*h} sc1")
    for s_ in range(3):
        for h in range(2):
            b(f"buffer_load_dwordx4 {v(vSc2+8*s_+4*h,4)}, v{vCc}, s[{sS}:{sS+3}], s{sT2} offen offset:{32*s_+16*h} sc1")
    for p in range(4):
        b(f"s_cmp_eq_u32 s{sP}, {p}")
        b(f"s_cbranch_scc0 L_at_rs{p}")
        for r in range(2):
            for i in range(10): b(f"v_accvgpr_read_b32 v{vBq+12*r+i}, a{PQ(p,r,i)}")
        b.label(f"L_at_rs{p}")
    for r in range(2):
        b(f"v_mov_b32 v{vBq+12*r+10}, 0"); b(f"v_mov_b32 v{vBq+12*r+11}, 0")
    b("s_waitcnt vmcnt(6)")
    for s_ in range(3):
        for k in range(4):
            b(f"v_cvt_pk_bf16_f32 v{u0}, v{vSa+8*s_+2*k}, v{vSa+8*s_+2*k+1}")
            b(f"v_cndmask_b32 v{vFa+4*s_+k}, 0, v{u0}, s[76:77]")
            b(f"v_cndmask_b32 v{vFa+12+4*s_+k}, v{u0}, 0, s[76:77]")
    b("s_waitcnt vmcnt(0)")
    for s_ in range(3):
        for k in range(4):
            b(f"v_cvt_pk_bf16_f32 v{u0}, v{vSc2+8*s_+2*k}, v{vSc2+8*s_+2*k+1}")
            b(f"v_cndmask_b32 v{vFa+24+4*s_+k}, 0, v{u0}, s[74:75]")
    b("s_nop 1")
    for r in range(2):
        for tl in range(3):
            for s_ in range(3):
                D_ = vD + 12*r + 4*tl
                C = "0" if s_ == 0 else v(D_,4)
                b(f"v_mfma_f32_16x16x32_bf16 {v(D_,4)}, {v(vFa+12*tl+4*s_,4)}, {v(vBq+12*r+4*s_,4)}, {C}")
    b(f"s_add_u32 s{sT2}, s{sT}, 144")
    b(f"s_lshl_b32 s{sT2}, s{sT2}, 10")
    b(f"s_lshr_b32 s72, s{sT}, 3")
    b(f"s_add_u32 s72, s72, 160")
    b(f"s_lshl_b32 s72, s72, 10")
    b(f"s_and_b32 s82, s{sT}, 7")
    b(f"s_lshr_b32 s83, s82, 1")
    b(f"s_lshl_b32 s83, s83, 8")
    b(f"s_and_b32 s82, s82, 1")
    b(f"s_lshl_b32 s82, s82, 3")
    b(f"s_add_u32 s83, s83, s82")
    b(f"s_add_u32 s72, s72, s83")
    b(f"v_lshlrev_b32 v{vLo}, 4, v{M}")
    b(f"v_lshl_add_u32 v{vLo}, v{G}, 2, v{vLo}")
    b("s_nop 4")
    for r in range(2):
        D_ = vD + 12*r
        c_ = D_ + 8
        b(f"v_add_f32 v{u0}, 0x{f2u(1e-6):08x}, v{c_}")
        b(f"v_add_f32 v{u1}, 0x{f2u(1e-6):08x}, v{c_+1}")
        b(f"v_rcp_f32 v{u0}, v{u0}")
        b(f"v_rcp_f32 v{u1}, v{u1}")
        b("s_nop 0")
        b(f"v_mul_f32 v{u0}, v{u0}, v{vG+r}")
        b(f"v_mul_f32 v{u1}, v{u1}, v{vG+r}")
        for i in range(4):
            b(f"v_mul_f32 v{D_+i}, v{D_+i}, v{u0}")
            b(f"v_mul_f32 v{D_+4+i}, v{D_+4+i}, v{u1}")
        b(f"v_cndmask_b32 v{u2}, v{u0}, v{u1}, s[78:79]")
        b(f"v_mul_f32 v{c_+2}, v{c_+2}, v{u2}")
        b(f"v_mul_f32 v{c_+3}, v{c_+3}, v{u2}")
        o = vSa + 8*r
        b(f"v_cvt_pk_bf16_f32 v{o}, v{D_}, v{D_+1}")
        b(f"v_cvt_pk_bf16_f32 v{o+1}, v{D_+2}, v{D_+3}")
        b(f"v_cvt_pk_bf16_f32 v{o+2}, v{D_+4}, v{D_+5}")
        b(f"v_cvt_pk_bf16_f32 v{o+3}, v{D_+6}, v{D_+7}")
        b(f"v_cvt_pk_bf16_f32 v{o+4}, v{c_+2}, v{c_+3}")
        b(f"s_add_u32 s82, s{sHo+r}, s{sT2}")
        b(f"buffer_store_dwordx4 {v(o,4)}, v{vHo}, s[{sHB}:{sHB+3}], s82 offen")
        b(f"s_add_u32 s82, s{sHo+r}, s72")
        b("s_mov_b64 s[80:81], exec")
        b("s_mov_b64 exec, s[76:77]")
        b(f"buffer_store_dword v{o+4}, v{vLo}, s[{sHB}:{sHB+3}], s82 offen")
        b("s_mov_b64 exec, s[80:81]")
    b(f"s_add_u32 s{sP}, s{sP}, 1")
    b(f"s_cmp_lt_u32 s{sP}, 4")
    b("s_cbranch_scc1 L_at_c")
    b("s_waitcnt vmcnt(0)")
    stamp(8)

def attn_table():
    T = scatter_table()
    s = "L_at_table:\n"
    for i in range(0, len(T), 16):
        s += "  .short " + ", ".join(str(x) for x in T[i:i+16]) + "\n"
    return s
```

```python
from asmlib import *
from ffn_up import HB_STEPS, HB_R16, HB_SIZE, S_OFF, G1_OFF, P_OFF, VM, f2u
P_UNIT = 4608
P_SIZE = 8*32*16*P_UNIT

def wo_row_table():
    T = []
    for x in range(8):
        w0 = 3*x if x < 2 else 2*x + 2
        rows = []
        for rho in range(96):
            q, rl = rho >> 5, rho & 31
            if x >= 2 and q == 2: rows.append(-1); continue
            om = w0 + q
            if om < 16: rows.append(36*om + rl + (2 if rl >= 16 else 0))
            else:
                u2, g, r4 = rl >> 4, (rl >> 2) & 3, rl & 3
                P = 8*(om-16) + 2*g + u2
                rows.append(36*P + 18*(r4 >> 1) + 16 + (r4 & 1))
        T.append(rows)
    return T

def gen_down(b, opt):
    SLOT = 28672; NSLOT = 5
    sHB, sW, sWo, sPs = 8, 12, 16, 20
    sx, sj, smt, snt, sw = 24, 25, 26, 27, 28
    sHs = 32
    sWs = 36
    sSlW = 37
    sSlR = 38
    sSig = 39
    sT = 40; sT2 = 41
    sM0 = 42
    sOOB = 43
    vOff = 2
    vOffO = 9
    vAw = 16
    vAc = 17
    vAn = 18
    vHo = 19
    vG1 = 20
    vA = 24
    ACC = 64
    t0, t1, t2, L, G = 208, 209, 210, 211, 212
    def Bf(st, q, r): return a((st*12 + q*4 + r)*4, 4)
    def acc(t, r): return ACC + (t*4 + r)*4
    def stamp(lane):
        if opt.get("stamps"):
            b("s_memtime s[92:93]"); b("s_waitcnt lgkmcnt(0)"); b(f"v_writelane_b32 v1, s92, {lane}")

    b("s_load_dwordx2 s[48:49], s[0:1], 56")
    b("s_load_dwordx2 s[50:51], s[0:1], 24")
    b("s_load_dwordx2 s[54:55], s[0:1], 88")
    b("s_getpc_b64 s[56:57]")
    b.label("L_dn_pc")
    b("s_add_u32 s56, s56, L_dn_table-L_dn_pc")
    b("s_addc_u32 s57, s57, 0")
    b(f"s_and_b32 s{sx}, s2, 7")
    b(f"s_lshr_b32 s{sj}, s2, 3")
    b(f"s_lshr_b32 s{smt}, s{sj}, 2")
    b(f"s_and_b32 s{snt}, s{sj}, 3")
    b(f"v_lshrrev_b32 v{t0}, 6, v0")
    b(f"v_and_b32 v{L}, 63, v0")
    b(f"v_readfirstlane_b32 s{sw}, v{t0}")
    b(f"v_lshrrev_b32 v{G}, 4, v{L}")
    b(f"v_lshlrev_b32 v{vHo}, 4, v{L}")
    b(f"v_bfe_u32 v{t0}, v{L}, 2, 2")
    b(f"v_lshl_add_u32 v{t0}, v{G}, 2, v{t0}")
    b(f"v_mul_u32_u24 v{vAw}, 288, v{t0}")
    b(f"v_and_b32 v{t1}, 3, v{L}")
    b(f"v_lshl_add_u32 v{vAw}, v{t1}, 3, v{vAw}")
    b(f"s_lshl_b32 s{sT}, s{sw}, 6")
    b(f"s_mul_i32 s{sT2}, s{sx}, 384")
    b("s_mov_b32 s44, 58255")
    for k in range(7):
        b(f"v_add_u32 v{t0}, s{sT}, v{L}")
        if k: b(f"v_add_u32 v{t0}, {256*k}, v{t0}")
        b(f"v_mul_u32_u24 v{t1}, s44, v{t0}")
        b(f"v_lshrrev_b32 v{t1}, 20, v{t1}")
        b(f"v_mul_u32_u24 v{t2}, 18, v{t1}")
        b(f"v_sub_u32 v{t2}, v{t0}, v{t2}")
        b(f"v_lshlrev_b32 v{vOffO+k}, 4, v{t2}")
        b(f"v_mul_u32_u24 v{vOff+k}, 1152, v{t1}")
        b(f"v_add_u32 v{vOff+k}, v{vOff+k}, v{vOffO+k}")
        b(f"v_min_u32 v{t1}, 95, v{t1}")
        b(f"v_lshlrev_b32 v{t1}, 2, v{t1}")
        b(f"v_add_u32 v{t1}, s{sT2}, v{t1}")
        b(f"global_load_dword v{vA+k}, v{t1}, s[56:57]")
    b("s_waitcnt lgkmcnt(0)")
    srd(b, sHB, 54, HB_SIZE)
    srd(b, sW, 48, 5308416)
    srd(b, sWo, 50, 663552)
    b(f"s_add_u32 s{sPs}, s54, {P_OFF}")
    b(f"s_addc_u32 s{sPs+1}, s55, 0")
    b(f"s_and_b32 s{sPs+1}, s{sPs+1}, 0xffff")
    b(f"s_mov_b32 s{sPs+2}, {P_SIZE}")
    b(f"s_mov_b32 s{sPs+3}, 0x00020000")
    b(f"s_lshl_b32 s{sT}, s{smt}, 2")
    b(f"s_add_u32 s{sT}, s{sT}, s{sw}")
    b(f"s_mul_i32 s{sHs}, s{sT}, {4*HB_R16}")
    b(f"s_mov_b32 s45, s{sHs}")
    b(f"s_mul_i32 s{sT2}, s{sx}, {18*1024}")
    b(f"s_add_u32 s{sHs}, s{sHs}, s{sT2}")
    for r in range(1, 4): b(f"s_add_u32 s{sHs+r}, s{sHs}, {r*HB_R16}")
    b(f"s_lshl_b32 s{sT}, s{sT}, 8")
    b(f"v_and_b32 v{t0}, 15, v{L}")
    b(f"v_lshlrev_b32 v{t0}, 2, v{t0}")
    b(f"v_add_u32 v{t0}, s{sT}, v{t0}")
    b(f"v_add_u32 v{t0}, {G1_OFF}, v{t0}")
    for r in range(4):
        b(f"global_load_dword v{vG1+r}, v{t0}, s[54:55] offset:{64*r}")
    b(f"s_mul_i32 s{sWs}, s{sx}, {576*1152}")
    b(f"s_mul_i32 s{sT}, s{snt}, 288")
    b(f"s_add_u32 s{sWs}, s{sWs}, s{sT}")
    b(f"s_mov_b32 s46, s{sT}")
    b(f"s_lshl_b32 s{sM0}, s{sw}, 10")
    b("s_waitcnt vmcnt(4)")
    for k in range(7):
        b(f"v_mul_i32_i24 v{t0}, 1152, v{vA+k}")
        b(f"v_add_u32 v{vOffO+k}, v{vOffO+k}, v{t0}")
        b(f"v_cmp_gt_i32 vcc, 0, v{vA+k}")
        b(f"v_mov_b32 v{t1}, 0x7f000000")
        b(f"v_cndmask_b32 v{vOffO+k}, v{vOffO+k}, v{t1}, vcc")
    b("s_waitcnt vmcnt(0)")

    def dma(k):
        return [f"s_add_u32 s{sT}, s{sSlW}, {k*4096}",
                f"s_add_u32 m0, s{sT}, s{sM0}",
                "s_nop 0",
                f"buffer_load_dwordx4 v{vOff+k}, s[{sW}:{sW+3}], s{sWs} offen lds"]
    def bload(st, q, r):
        return f"buffer_load_dwordx4 {Bf(st,q,r)}, v{vHo}, s[{sHB}:{sHB+3}], s{sHs+r} offen offset:{q*1024}"
    def adv_slotW():
        return [f"s_add_u32 s{sSlW}, s{sSlW}, {SLOT}",
                f"s_cmp_eq_u32 s{sSlW}, {SLOT*NSLOT}",
                f"s_cselect_b32 s{sSlW}, 0, s{sSlW}"]
    b(f"s_mov_b32 s{sSlW}, 0")
    for n in range(3):
        for k in range(7): b.ext(dma(k))
        b.ext(adv_slotW())
        b(f"s_add_u32 s{sWs}, s{sWs}, {96*1152}")
        if n < 2:
            for q in range(3):
                for r in range(4): b(bload(n, q, r))
            for r in range(4): b(f"s_add_u32 s{sHs+r}, s{sHs+r}, 3072")
    b(f"s_mov_b32 s{sSig}, 0")
    b(f"s_mov_b32 s{sSlR}, 0")
    b(f"v_mov_b32 v{vAc}, v{vAw}")
    b("s_waitcnt vmcnt(38)")
    b("s_barrier")
    def rd(t, q, addr):
        d = vA + t*4
        return [f"ds_read_b64_tr_b16 {v(d,2)}, v{addr} offset:{q*9216 + t*32}",
                f"ds_read_b64_tr_b16 {v(d+2,2)}, v{addr} offset:{q*9216 + 4608 + t*32}"]
    D = 4
    for t in range(D): b.ext(rd(t, 0, vAc))
    for i in range(144): b(f"v_mov_b32 v{ACC+i}, 0")
    stamp(9)

    def stage(st):
        out = []
        out.append(f"s_add_u32 s{sSlR}, s{sSlR}, {SLOT}")
        out.append(f"s_cmp_eq_u32 s{sSlR}, {SLOT*NSLOT}")
        out.append(f"s_cselect_b32 s{sSlR}, 0, s{sSlR}")
        out.append(f"v_add_u32 v{vAn}, s{sSlR}, v{vAw}")
        out.append("s_waitcnt vmcnt(26)")
        vmq = [("b", bload((st+2) % 3, q, r)) for q in range(3) for r in range(4)]
        dq = []
        for k in range(7): dq.append(dma(k))
        nb_issued = 0; nd_issued = 0
        for tau in range(27):
            q, t = tau // 9, tau % 9
            if tau == 18:
                out.append(f"s_waitcnt vmcnt({19 + nb_issued + nd_issued})")
                out.append("s_barrier")
            out.append(f"s_waitcnt lgkmcnt({2*(D-1)})")
            nt_ = tau + D
            if nt_ < 27: rds = rd(nt_ % 9, nt_ // 9, vAc)
            else: rds = rd(nt_ - 27, 0, vAn)
            fill = list(rds)
            if tau < 12:
                fill.append(vmq[tau][1]); nb_issued += 1
            elif tau < 18 or (tau >= 19 and tau < 20):
                pass
            if 12 <= tau < 19:
                fill_d = dq[tau-12]; fill += fill_d; nd_issued += 1
            for r in range(4):
                out.append(f"v_mfma_f32_16x16x32_bf16 {v(acc(t,r),4)}, {v(vA+t*4,4)}, {Bf(st,q,r)}, {v(acc(t,r),4)}")
                n = (len(fill) + (3-r)) // (4-r)
                for _ in range(n):
                    if fill: out.append(fill.pop(0))
            assert not fill
        assert nb_issued == 12 and nd_issued == 7
        out.append(f"v_mov_b32 v{vAc}, v{vAn}")
        out += adv_slotW()
        out.append(f"s_add_u32 s{sSig}, s{sSig}, 1")
        return out
    def post(idx):
        out = []
        out.append(f"s_add_u32 s{sWs}, s{sWs}, {96*1152}")
        out.append(f"s_cmp_eq_u32 s{sSig}, 3")
        out.append(f"s_cbranch_scc0 L_dn_nsw{idx}")
        for i in range(4): out.append(f"s_mov_b32 s{sW+i}, s{sWo+i}")
        out.append(f"s_mov_b32 s{sWs}, s46")
        for k in range(7): out.append(f"v_mov_b32 v{vOff+k}, v{vOffO+k}")
        out.append(f"L_dn_nsw{idx}:")
        out.append(f"s_cmp_gt_u32 s{sSig}, 3")
        out.append(f"s_cselect_b32 s{sW+2}, 0, s{sW+2}")
        for r in range(4): out.append(f"s_add_u32 s{sHs+r}, s{sHs+r}, 3072")
        out.append(f"s_cmp_eq_u32 s{sSig}, 4")
        out.append(f"s_cbranch_scc0 L_dn_nsb{idx}")
        out.append(f"s_mul_i32 s{sT}, s{sx}, 3")
        out.append(f"s_lshl_b32 s{sT2}, s{sx}, 1")
        out.append(f"s_add_u32 s{sT2}, s{sT2}, 2")
        out.append(f"s_cmp_lt_u32 s{sx}, 2")
        out.append(f"s_cselect_b32 s{sT}, s{sT}, s{sT2}")
        out.append(f"s_add_u32 s{sT}, s{sT}, 144")
        out.append(f"s_lshl_b32 s{sT}, s{sT}, 10")
        out.append(f"s_add_u32 s{sHs}, s45, s{sT}")
        for r in range(1, 4): out.append(f"s_add_u32 s{sHs+r}, s{sHs}, {r*HB_R16}")
        out.append(f"L_dn_nsb{idx}:")
        out.append(f"s_cmp_gt_u32 s{sSig}, 4")
        out.append(f"s_cselect_b32 s{sHB+2}, 0, s{sHB+2}")
        return out

    b(".p2align 6")
    b.label("L_dn_loop")
    b(f"s_cmp_eq_u32 s{sSig}, 6")
    b("s_cbranch_scc0 L_dn_noscale")
    b("s_nop 7"); b("s_nop 3")
    for t in range(9):
        for r in range(4):
            for i in range(4): b(f"v_mul_f32 v{acc(t,r)+i}, v{acc(t,r)+i}, v{vG1+r}")
    b("s_nop 1")
    b.label("L_dn_noscale")
    b.ext(stage(0))
    b(f"s_cmp_eq_u32 s{sSig}, 7")
    b("s_cbranch_scc1 L_dn_done")
    b.ext(post(0))
    b.ext(stage(1)); b.ext(post(1))
    b.ext(stage(2)); b.ext(post(2))
    b("s_branch L_dn_loop")
    b.label("L_dn_done")
    stamp(10)
    b("s_nop 7"); b("s_nop 3")
    b(f"s_lshl_b32 s{sT}, s{sx}, 5")
    b(f"s_add_u32 s{sT}, s{sT}, s{sj}")
    b(f"s_lshl_b32 s{sT}, s{sT}, 2")
    b(f"s_add_u32 s{sT}, s{sT}, s{sw}")
    b(f"s_mul_i32 s{sT}, s{sT}, {4*P_UNIT}")
    b(f"v_lshrrev_b32 v{t2}, 1, v{vHo}")
    kk = 0
    for r in range(4):
        for tp in range(4):
            Pk = vA + (kk % 4)*4; kk += 1
            for h in range(2):
                A_ = acc(2*tp + h, r)
                b(f"v_cvt_pk_bf16_f32 v{Pk+2*h}, v{A_}, v{A_+1}")
                b(f"v_cvt_pk_bf16_f32 v{Pk+2*h+1}, v{A_+2}, v{A_+3}")
            b(f"buffer_store_dwordx4 {v(Pk,4)}, v{vHo}, s[{sPs}:{sPs+3}], s{sT} offen offset:{tp*1024}")
        Pk = vA + 16 + (r % 2)*2
        A_ = acc(8, r)
        b(f"v_cvt_pk_bf16_f32 v{Pk}, v{A_}, v{A_+1}")
        b(f"v_cvt_pk_bf16_f32 v{Pk+1}, v{A_+2}, v{A_+3}")
        b(f"s_add_u32 s{sT2}, s{sT}, 4096")
        b(f"buffer_store_dwordx2 {v(Pk,2)}, v{t2}, s[{sPs}:{sPs+3}], s{sT2} offen")
        b(f"s_add_u32 s{sT}, s{sT}, {P_UNIT}")
    b("s_waitcnt vmcnt(0)")

def down_table():
    T = wo_row_table()
    s = "L_dn_table:\n"
    for rows in T:
        s += "  .long " + ", ".join(str(r) for r in rows) + "\n"
    return s

def gen_reduce(b, opt):
    sP, sO = 8, 12
    b("s_load_dwordx2 s[54:55], s[0:1], 88")
    b("s_load_dwordx2 s[52:53], s[0:1], 72")
    b("v_lshrrev_b32 v2, 6, v0")
    b("v_and_b32 v3, 63, v0")
    b("v_readfirstlane_b32 s28, v2")
    b("s_lshl_b32 s20, s2, 2")
    b("s_add_u32 s20, s20, s28")
    b("s_and_b32 s21, s20, 1")
    b("s_lshr_b32 s22, s20, 1")
    b("s_waitcnt lgkmcnt(0)")
    b(f"s_add_u32 s{sP}, s54, {P_OFF}")
    b(f"s_addc_u32 s{sP+1}, s55, 0")
    b(f"s_and_b32 s{sP+1}, s{sP+1}, 0xffff")
    b(f"s_mov_b32 s{sP+2}, {P_SIZE}")
    b(f"s_mov_b32 s{sP+3}, 0x00020000")
    srd(b, sO, 52, 2359296)
    b(f"s_mul_i32 s23, s22, {P_UNIT}")
    b("s_lshl_b32 s24, s21, 11")
    b("s_add_u32 s23, s23, s24")
    b("v_lshlrev_b32 v4, 4, v3")
    b("v_lshlrev_b32 v5, 3, v3")
    b("s_add_u32 s25, s23, 2048")
    for x in range(8):
        base = 16 + 10*x
        b(f"s_add_u32 s26, s23, {x*32*16*P_UNIT}")
        b(f"buffer_load_dwordx4 {v(base,4)}, v4, s[{sP}:{sP+3}], s26 offen")
        b(f"buffer_load_dwordx4 {v(base+4,4)}, v4, s[{sP}:{sP+3}], s26 offen offset:1024")
        b(f"s_add_u32 s27, s25, {x*32*16*P_UNIT}")
        b(f"buffer_load_dwordx2 {v(base+8,2)}, v5, s[{sP}:{sP+3}], s27 offen")
    b("s_lshr_b32 s29, s22, 4")
    b("s_lshr_b32 s30, s29, 2")
    b("s_and_b32 s31, s29, 3")
    b("s_and_b32 s32, s22, 15")
    b("s_lshl_b32 s33, s30, 4")
    b("s_add_u32 s33, s33, s32")
    b(f"s_mul_i32 s33, s33, {16*1152}")
    b("s_mul_i32 s34, s31, 288")
    b("s_add_u32 s33, s33, s34")
    b("s_lshl_b32 s34, s21, 7")
    b("s_add_u32 s33, s33, s34")
    b("v_and_b32 v6, 15, v3")
    b("v_mul_u32_u24 v6, 1152, v6")
    b("v_lshrrev_b32 v7, 4, v3")
    b("v_lshl_add_u32 v6, v7, 3, v6")
    ACC = 100
    b("s_mov_b32 s35, 0xffff0000")
    for x in range(8):
        base = 16 + 10*x
        b(f"s_waitcnt vmcnt({3*(7-x)})")
        for d in range(10):
            if x == 0:
                b(f"v_lshlrev_b32 v{ACC+2*d}, 16, v{base+d}")
                b(f"v_and_b32 v{ACC+2*d+1}, s35, v{base+d}")
            else:
                b(f"v_lshlrev_b32 v8, 16, v{base+d}")
                b(f"v_and_b32 v9, s35, v{base+d}")
                b(f"v_add_f32 v{ACC+2*d}, v{ACC+2*d}, v8")
                b(f"v_add_f32 v{ACC+2*d+1}, v{ACC+2*d+1}, v9")
    for d in range(10):
        b(f"v_cvt_pk_bf16_f32 v{16+d}, v{ACC+2*d}, v{ACC+2*d+1}")
    for tl in range(4):
        b(f"buffer_store_dwordx2 {v(16+2*tl,2)}, v6, s[{sO}:{sO+3}], s33 offen offset:{tl*32}")
    b("s_cmp_eq_u32 s21, 1")
    b("s_cbranch_scc0 L_rd_done")
    b(f"buffer_store_dwordx2 {v(24,2)}, v6, s[{sO}:{sO+3}], s33 offen offset:128")
    b.label("L_rd_done")
    b("s_waitcnt vmcnt(0)")
```

```python
from asmlib import *
import struct
def f2u(x): return struct.unpack("<I", struct.pack("<f", x))[0]

HB_STEPS = 162
HB_R16 = HB_STEPS*1024
HB_SIZE = 128*HB_R16
S_OFF   = 0x1440000
G1_OFF  = 0x1470000
P_OFF   = 0x1480000

GK0 = -2.0*0.7978845608028654*1.4426950408889634
GK1 = GK0*0.044715

class VM:
    def __init__(self): self.n = 0
    def issue(self): self.n += 1; return self.n - 1
    def wait_for(self, idx): return min(63, self.n - 1 - idx)

def gen_ffn_up(b, opt):
    BUF = 73728
    SPARE = 147456
    sX, sG, sU, sH = 8, 12, 16, 20
    sx, sj, smt, snt, sw = 24, 25, 26, 27, 28
    sXr = 32
    sHr = 36
    sWb = 40
    sM0 = 41
    sT = 42
    sCnt = 43
    sM0s = 44
    vXd = 14
    vWo, vHo, vK0 = 10, 11, 12
    vA = 2
    vT = 16
    vP = 24
    vF = 32
    accE, accO = 64, 128
    vXov = 192
    vXl = 224
    def X(r, bb):
        ph = bb*4 + r
        return a(4*ph, 4) if ph < 64 else v(vXov + 4*(ph-64), 4)
    def acc(base, f, r): return base + (f*4 + r)*4
    def stamp(lane):
        if opt.get("stamps"):
            b("s_memtime s[92:93]"); b("s_waitcnt lgkmcnt(0)"); b(f"v_writelane_b32 v13, s92, {lane}")

    b("s_load_dwordx2 s[48:49], s[0:1], 0")
    b("s_load_dwordx2 s[50:51], s[0:1], 40")
    b("s_load_dwordx2 s[52:53], s[0:1], 48")
    b("s_load_dwordx2 s[54:55], s[0:1], 88")
    b(f"s_and_b32 s{sx}, s2, 7")
    b(f"s_lshr_b32 s{sj}, s2, 3")
    b(f"s_mul_i32 s{smt}, s{sj}, 171")
    b(f"s_lshr_b32 s{smt}, s{smt}, 9")
    b(f"s_mul_i32 s{sT}, s{smt}, 3")
    b(f"s_sub_u32 s{snt}, s{sj}, s{sT}")
    b(f"s_mul_i32 s{sT}, s{sx}, 3")
    b(f"s_add_u32 s{snt}, s{snt}, s{sT}")
    L, G, M = 228, 229, 230
    t0, t1, t2 = 231, 232, 233
    b(f"v_lshrrev_b32 v{t0}, 6, v0")
    b(f"v_and_b32 v{L}, 63, v0")
    b(f"v_readfirstlane_b32 s{sw}, v{t0}")
    b(f"v_lshrrev_b32 v{G}, 4, v{L}")
    b(f"v_and_b32 v{M}, 15, v{L}")
    b(f"v_lshrrev_b32 v{t0}, 2, v{L}")
    b(f"v_mul_u32_u24 v{vWo}, 9216, v{t0}")
    b(f"v_lshrrev_b32 v{t0}, 1, v{L}")
    b(f"v_lshrrev_b32 v{t1}, 5, v{L}")
    b(f"v_xor_b32 v{t0}, v{t0}, v{t1}")
    b(f"v_and_b32 v{t0}, 1, v{t0}")
    b(f"v_lshl_add_u32 v{vWo}, v{t0}, 5, v{vWo}")
    b(f"v_and_b32 v{t0}, 1, v{L}")
    b(f"v_lshl_add_u32 v{vWo}, v{t0}, 4, v{vWo}")
    for o in range(2):
        b(f"v_lshrrev_b32 v{t0}, 3, v{L}")
        b(f"v_add_u32 v{t0}, {8*o}, v{t0}")
        b(f"v_mul_u32_u24 v{vXd+o}, 1152, v{t0}")
        b(f"v_and_b32 v{t0}, 7, v{L}")
        b(f"v_add_u32 v{t1}, {4*o}, v{G}")
        b(f"v_xor_b32 v{t0}, v{t0}, v{t1}")
        b(f"v_lshl_add_u32 v{vXd+o}, v{t0}, 4, v{vXd+o}")
    b(f"v_lshlrev_b32 v{vHo}, 4, v{L}")
    b(f"v_bfe_u32 v{t0}, v{L}, 2, 2")
    b(f"v_lshl_add_u32 v{t0}, v{G}, 3, v{t0}")
    b(f"v_lshlrev_b32 v{t0}, 6, v{t0}")
    b(f"v_and_b32 v{t1}, 3, v{L}")
    b(f"v_lshl_add_u32 v{t0}, v{t1}, 3, v{t0}")
    b(f"v_and_b32 v{t1}, 1, v{G}")
    b(f"v_lshl_add_u32 v16, v{t1}, 5, v{t0}")
    b(f"v_xor_b32 v{t1}, 1, v{t1}")
    b(f"v_lshl_add_u32 v17, v{t1}, 5, v{t0}")
    for be in range(2):
        for mu in range(2):
            for t in range(2):
                off = be*BUF + mu*36864
                b(f"v_add_u32 v{vA + be*4 + mu*2 + t}, {off}, v{16+t}")
    b(f"v_mov_b32 v{vK0}, 0x{f2u(GK0):08x}")
    for q in range(2):
        b(f"v_lshrrev_b32 v{t0}, 1, v{M}")
        b(f"v_add_u32 v{t1}, {4*q}, v{G}")
        b(f"v_xor_b32 v{t0}, v{t0}, v{t1}")
        b(f"v_lshlrev_b32 v{t0}, 4, v{t0}")
        b(f"v_lshl_add_u32 v{vXl+q}, v{M}, 7, v{t0}")
    b(f"s_mul_i32 s{sM0}, s{sw}, 9216")
    b(f"s_lshl_b32 s{sM0s}, s{sw}, 12")
    b(f"s_add_u32 s{sM0s}, s{sM0s}, {SPARE}")
    b(f"s_add_u32 s{sT}, s{sM0}, {BUF}")
    for q in range(2):
        b(f"v_add_u32 v{vXl+2+q}, s{sM0s}, v{vXl+q}")
        b(f"v_add_u32 v{vXl+q}, s{sT}, v{vXl+q}")
    b("s_waitcnt lgkmcnt(0)")
    srd(b, sX, 48, 2359296)
    srd(b, sG, 50, 5308416)
    srd(b, sU, 52, 5308416)
    srd(b, sH, 54, HB_SIZE)
    b(f"s_lshl_b32 s{sT}, s{smt}, 2")
    b(f"s_add_u32 s{sT}, s{sT}, s{sw}")
    b(f"s_mul_i32 s{sXr}, s{sT}, {64*1152}")
    for r in range(1, 4):
        b(f"s_add_u32 s{sXr+r}, s{sXr}, {r*16*1152}")
    b(f"s_mul_i32 s{sHr}, s{sT}, {4*HB_R16}")
    b(f"s_mul_i32 s{sT}, s{snt}, {6*1024}")
    b(f"s_add_u32 s{sHr}, s{sHr}, s{sT}")
    for r in range(1, 4):
        b(f"s_add_u32 s{sHr+r}, s{sHr}, {r*HB_R16}")
    b(f"s_mul_i32 s{sWb}, s{sw}, {9*16*9216}")
    b(f"s_mul_i32 s{sT}, s{snt}, 384")
    b(f"s_add_u32 s{sWb}, s{sWb}, s{sT}")

    def dma_group(k, beta):
        return [f"s_add_u32 m0, s{sM0}, {beta*BUF + k*1024}",
                f"s_add_u32 s{sT}, s{sWb}, {k*16*9216}",
                f"buffer_load_dwordx4 v{vWo}, s[{sG}:{sG+3}], s{sT} offen lds",
                f"s_add_u32 m0, s{sM0}, {beta*BUF + 36864 + k*1024}",
                "s_nop 0",
                f"buffer_load_dwordx4 v{vWo}, s[{sU}:{sU+3}], s{sT} offen lds"]
    NSL = 10
    def slot_m0(sl, o):
        if sl < 4: return f"s_add_u32 m0, s{sM0}, {BUF + sl*2048 + o*1024}"
        if sl < 8: return f"s_add_u32 m0, s{sM0}, {BUF + 36864 + (sl-4)*2048 + o*1024}"
        return f"s_add_u32 m0, s{sM0s}, {(sl-8)*2048 + o*1024}"
    def xdma(jx):
        kap, r = jx >> 2, jx & 3
        sl = jx % NSL
        return [slot_m0(sl, 0),
                f"s_add_u32 s{sT}, s{sXr+r}, {kap*128}",
                f"buffer_load_dwordx4 v{vXd}, s[{sX}:{sX+3}], s{sT} offen lds",
                slot_m0(sl, 1),
                "s_nop 0",
                f"buffer_load_dwordx4 v{vXd+1}, s[{sX}:{sX+3}], s{sT} offen lds"]
    def xread(jx):
        kap, r = jx >> 2, jx & 3
        sl = jx % NSL
        out = []
        for q in range(2):
            if sl < 4: ad, off = vXl+q, sl*2048
            elif sl < 8: ad, off = vXl+q, 36864 + (sl-4)*2048
            else: ad, off = vXl+2+q, (sl-8)*2048
            out.append(f"ds_read_b128 {X(r, 2*kap+q)}, v{ad} offset:{off}")
        return out

    def rd(beta, f, bb, ring):
        mu, t = f >> 1, f & 1
        ad = vA + beta*4 + mu*2 + t
        d = vF + ring*16 + f*4
        return [f"ds_read_b64_tr_b16 {v(d,2)}, v{ad} offset:{bb*2048}",
                f"ds_read_b64_tr_b16 {v(d+2,2)}, v{ad} offset:{bb*2048+256}"]
    def mfma(base, bb, slot):
        f, r = slot >> 2, slot & 3
        D = acc(base, f, r); A = vF + (bb & 1)*16 + f*4
        C = "0" if bb == 0 else v(D, 4)
        return f"v_mfma_f32_16x16x32_bf16 {v(D,4)}, {v(A,4)}, {X(r,bb)}, {C}"

    vm = VM()
    stamp(9)
    w0_last = None
    for k in range(9):
        b.ext(dma_group(k, 0)); vm.issue(); w0_last = vm.issue()
    b(f"s_add_u32 s{sWb}, s{sWb}, 64")
    xid = {}
    def issue_x(jx, out):
        out += xdma(jx); vm.issue(); xid[jx] = vm.issue()
    tmp = []
    for jx in range(NSL): issue_x(jx, tmp)
    b.ext(tmp)
    stamp(10)
    b(f"s_waitcnt vmcnt({vm.wait_for(w0_last)})")
    b("s_barrier")
    stamp(11)
    for f in range(4): b.ext(rd(0, f, 0, 0))
    b(f"s_waitcnt vmcnt({vm.wait_for(xid[3])})")
    for jx in range(4): b.ext(xread(jx))
    stamp(12)
    last_read_step = {}
    for jx in range(36):
        kap, r = jx >> 2, jx & 3
        st = 2*kap - 2 + (r >> 1)
        last_read_step[jx % NSL] = st
    w1_pending = list(range(9))
    prev_read = [0, 1, 2, 3]
    w1_last = None
    for bb in range(18):
        pre = []
        reads_x = []
        kap1 = (bb >> 1) + 1
        xr = []
        if kap1 <= 8:
            xr = [4*kap1 + 2*(bb & 1), 4*kap1 + 2*(bb & 1) + 1]
        if bb == 17:
            b(f"s_waitcnt vmcnt({vm.wait_for(w1_last)}) lgkmcnt(0)")
            b("s_barrier")
        elif xr:
            b(f"s_waitcnt vmcnt({vm.wait_for(xid[xr[-1]])}) lgkmcnt(0)")
        else:
            b("s_waitcnt lgkmcnt(0)")
        fill = []
        nb, nbeta = (bb+1, 0) if bb < 17 else (0, 1)
        for f in range(4): fill += rd(nbeta, f, nb, 1 - (bb & 1))
        for jx in xr: fill += xread(jx)
        dm = []
        for jx in prev_read:
            if jx + NSL < 36: issue_x(jx + NSL, dm)
        while w1_pending:
            k = w1_pending[0]
            if k < 8:
                ok = last_read_step[k >> 1] < bb and last_read_step[4 + (k >> 1)] < bb
            else: ok = True
            if ok and len(xid) == 36:
                dm += dma_group(k, 1); vm.issue(); w1_last = vm.issue(); w1_pending.pop(0)
            else: break
        fill += dm
        prev_read = xr
        main = [mfma(accE, bb, s_) for s_ in range(16)]
        per = (len(fill) + 15)//16
        k = 0
        for m in main:
            b(m)
            for _ in range(per):
                if k < len(fill): b(fill[k]); k += 1
        assert k == len(fill)
    assert not w1_pending
    b(f"s_add_u32 s{sWb}, s{sWb}, 64")
    stamp(7)
    b(f"s_mov_b32 s{sCnt}, 3")
    if opt.get("stamps"): b("s_mov_b32 s90, 1")
    b("s_branch L_ffn_odd")

    def gelu_group(base, r, t, ts):
        Gr = acc(base, t, r); U = acc(base, 2+t, r); T = vT + ts*4
        Ls = []
        for i in range(4): Ls.append((f"v_mul_f32 v{T+i}, v{Gr+i}, v{Gr+i}", 1))
        for i in range(4): Ls.append((f"v_fmamk_f32 v{T+i}, v{T+i}, 0x{f2u(GK1):08x}, v{vK0}", 1))
        for i in range(4): Ls.append((f"v_mul_f32 v{T+i}, v{T+i}, v{Gr+i}", 1))
        for i in range(4): Ls.append((f"v_exp_f32 v{T+i}, v{T+i}", opt.get("trans",2)))
        for i in range(4): Ls.append((f"v_mul_f32 v{U+i}, v{Gr+i}, v{U+i}", 1))
        for i in range(4): Ls.append((f"v_add_f32 v{T+i}, 1.0, v{T+i}", 1))
        for i in range(4): Ls.append((f"v_rcp_f32 v{T+i}, v{T+i}", opt.get("trans",2)))
        for i in range(4): Ls.append((f"v_mul_f32 v{U+i}, v{U+i}, v{T+i}", 1))
        return Ls, U
    def gelu_all(base):
        Ls = []
        for r in range(4):
            P = vP + (r & 1)*4
            for t in range(2):
                g, U = gelu_group(base, r, t, t)
                Ls += g
                Ls.append((f"v_cvt_pk_bf16_f32 v{P+2*t}, v{U}, v{U+1}", 1))
                Ls.append((f"v_cvt_pk_bf16_f32 v{P+2*t+1}, v{U+2}, v{U+3}", 1))
            Ls.append((f"buffer_store_dwordx4 {v(P,4)}, v{vHo}, s[{sH}:{sH+3}], s{sHr+r} offen", 1, "vm"))
        return Ls

    def body(par):
        beta = par; base = accE if par == 0 else accO; prev = accO if par == 0 else accE
        gel = gelu_all(prev) if not opt.get("nogelu") else []
        gi = 0
        dma_steps = {0:0, 1:1, 3:2, 4:3, 6:4, 7:5, 9:6, 10:7, 12:8}
        budget = opt.get("budget", 2)
        vm_issued = 0; last_dma_idx = 0
        out = []
        carry = 0
        for bb in range(18):
            ring = bb & 1
            if bb == 17:
                out.append(f"s_waitcnt vmcnt({vm_issued - last_dma_idx}) lgkmcnt(0)")
                out.append("s_barrier")
            else:
                out.append("s_waitcnt lgkmcnt(0)")
            nb, nbeta = (bb+1, beta) if bb < 17 else (0, 1-beta)
            reads = []
            for f in range(4): reads += rd(nbeta, f, nb, 1-ring)
            dm = []
            if bb in dma_steps and not opt.get("nodma"):
                dm = dma_group(dma_steps[bb], 1-beta)
            for slot in range(16):
                out.append(mfma(base, bb, slot))
                bud = budget + carry
                carry = 0
                if slot < 8:
                    out.append(reads[slot]); bud -= 1
                elif dm:
                    k = 0
                    while dm and k < 2 and bud > 0:
                        x = dm.pop(0); out.append(x); bud -= 1; k += 1
                        if x.startswith("buffer_load"):
                            vm_issued += 1; last_dma_idx = vm_issued
                if bb == 0 and slot < 4: continue
                while gi < len(gel) and bud > 0:
                    it = gel[gi]
                    if it[1] > bud and bud < budget: break
                    out.append(it[0]); bud -= it[1]; gi += 1
                    if len(it) > 2: vm_issued += 1
                carry = min(bud, 0)
            assert not dm
        left = len(gel) - gi
        while gi < len(gel):
            out.append(gel[gi][0]); gi += 1
        out.append(f"s_add_u32 s{sWb}, s{sWb}, 64")
        for r in range(4): out.append(f"s_add_u32 s{sHr+r}, s{sHr+r}, 1024")
        return out, left
    def pstamp():
        if opt.get("stamps"):
            b("s_memtime s[92:93]"); b("s_waitcnt lgkmcnt(0)")
            b("s_mov_b32 m0, s90"); b("s_nop 1"); b("v_writelane_b32 v13, s92, m0"); b("s_add_u32 s90, s90, 1")

    b(".p2align 6")
    b.label("L_ffn_even")
    e, left_e = body(0)
    b.ext(e)
    pstamp()
    b.label("L_ffn_odd")
    o, left_o = body(1)
    b.ext(o)
    pstamp()
    b(f"s_sub_u32 s{sCnt}, s{sCnt}, 1")
    b(f"s_cmp_lg_u32 s{sCnt}, 0")
    b("s_cbranch_scc1 L_ffn_even")
    b("s_nop 7")
    b("s_nop 7")
    for it in gelu_all(accO):
        b(it[0])
    b("s_waitcnt vmcnt(0)")

def timing_tail(b, opt):
    b("s_memtime s[64:65]")
    b("s_memrealtime s[66:67]")
    b("s_waitcnt lgkmcnt(0)")
    b("s_mov_b32 s68, s64")
    b("s_sub_u32 s64, s64, s60")
    b("s_sub_u32 s66, s66, s62")
    b("v_mov_b32 v4, s64"); b("v_mov_b32 v5, s66")
    if opt.get("stamps"):
        b("v_writelane_b32 v13, s60, 6")
        b("v_writelane_b32 v13, s68, 8")
        b("s_lshl_b32 s3, s2, 6")
        b("s_add_u32 s3, s3, 0x4100000")
        b("v_lshlrev_b32 v14, 2, v0")
        b("v_add_u32 v14, s3, v14")
        b("v_cmp_gt_u32 vcc, 16, v0")
        b("s_and_saveexec_b64 s[70:71], vcc")
        b("s_cbranch_execz L_skipst")
        b("global_store_dword v14, v13, s[54:55]")
        b.label("L_skipst")
        b("s_mov_b64 exec, s[70:71]")
    b("s_lshl_b32 s3, s2, 3")
    b(f"s_add_u32 s3, s3, 0x4000000")
    b("v_mov_b32 v3, s3")
    b("v_cmp_eq_u32 vcc, 0, v0")
    b("s_and_saveexec_b64 s[70:71], vcc")
    b("s_cbranch_execz L_exit")
    b("global_store_dwordx2 v3, v[4:5], s[54:55]")

if __name__ == "__main__":
    import sys
    opt = {}
    for x in sys.argv[2:]:
        k, _, val = x.partition("=")
        opt[k] = int(val) if val else 1
    name = "ffnup_kernel"
    b = B()
    b("s_cmp_ge_u32 s2, 256")
    b("s_cbranch_scc1 L_exit")
    b("s_lshr_b32 s3, s2, 3")
    b("s_cmp_ge_u32 s3, 24")
    b("s_cbranch_scc1 L_exit")
    if opt.get("time"):
        b("s_memtime s[60:61]")
        b("s_memrealtime s[62:63]")
    gen_ffn_up(b, opt)
    if opt.get("time"): timing_tail(b, opt)
    b.label("L_exit")
    b("s_endpgm")
    txt = f"; @launch kernel={name} grid=(256,1,1) block=(256,1,1) lds=163840\n"
    txt += '.amdgcn_target "amdgcn-amd-amdhsa--gfx950"\n.text\n' + kernel_header(name) + b.text()
    txt += '.section .rodata,"a"\n' + kernel_desc(name, 256, 256)
    open(sys.argv[1], "w").write(txt)
```

```python
import sys
from asmlib import *
import ffn_up, down, attn
opt = {}
for x in sys.argv[2:]:
    k, _, val = x.partition("=")
    opt[k] = int(val) if val else 1
def k_ffn():
    b = B()
    b("s_cmp_ge_u32 s2, 256"); b("s_cbranch_scc1 L_exit1")
    b("s_lshr_b32 s3, s2, 3"); b("s_cmp_ge_u32 s3, 24"); b("s_cbranch_scc1 L_attn")
    if opt.get("noffn"): b("s_branch L_exit1")
    ffn_up.gen_ffn_up(b, opt)
    b.label("L_exit1"); b("s_endpgm")
    b.label("L_attn")
    if opt.get("time"):
        b("s_memtime s[84:85]")
    attn.gen_attn(b, opt)
    if opt.get("time"):
        b("s_memtime s[86:87]"); b("s_waitcnt lgkmcnt(0)")
        b("v_writelane_b32 v255, s84, 0"); b("v_writelane_b32 v255, s86, 9")
        b("s_lshl_b32 s3, s2, 6"); b("s_add_u32 s3, s3, 0x4300000")
        b("v_lshlrev_b32 v14, 2, v0"); b("v_add_u32 v14, s3, v14")
        b("v_cmp_gt_u32 vcc, 16, v0"); b("s_and_saveexec_b64 s[80:81], vcc"); b("s_cbranch_execz L_exit1b")
        b("global_store_dword v14, v255, s[70:71]")
        b.label("L_exit1b")
    b("s_endpgm")
    return b
def k_down():
    b = B()
    b("s_cmp_ge_u32 s2, 256"); b("s_cbranch_scc1 L_exit2")
    if opt.get("time"):
        b("s_memtime s[60:61]"); b("s_memrealtime s[62:63]")
    down.gen_down(b, opt)
    if opt.get("time"):
        b("s_memtime s[64:65]"); b("s_memrealtime s[66:67]"); b("s_waitcnt lgkmcnt(0)")
        b("v_writelane_b32 v1, s60, 6"); b("v_writelane_b32 v1, s64, 8")
        b("s_sub_u32 s64, s64, s60"); b("s_sub_u32 s66, s66, s62")
        b("v_writelane_b32 v1, s64, 0"); b("v_writelane_b32 v1, s66, 1")
        b("s_lshl_b32 s3, s2, 6"); b("s_add_u32 s3, s3, 0x4200000")
        b("v_lshlrev_b32 v14, 2, v0"); b("v_add_u32 v14, s3, v14")
        b("v_cmp_gt_u32 vcc, 16, v0"); b("s_and_saveexec_b64 s[70:71], vcc"); b("s_cbranch_execz L_exit2")
        b("global_store_dword v14, v1, s[54:55]")
    b.label("L_exit2"); b("s_endpgm")
    return b
def k_red():
    b = B()
    b("s_cmp_ge_u32 s2, 256"); b("s_cbranch_scc1 L_exit3")
    down.gen_reduce(b, opt)
    b.label("L_exit3"); b("s_endpgm")
    return b
txt = "; @launch kernel=ffn_kernel grid=(256,1,1) block=(256,1,1) lds=163840\n"
txt += "; @launch kernel=down_kernel grid=(256,1,1) block=(256,1,1) lds=143360\n"
txt += "; @launch kernel=red_kernel grid=(256,1,1) block=(256,1,1) lds=0\n"
txt += '.amdgcn_target "amdgcn-amd-amdhsa--gfx950"\n.text\n'
txt += kernel_header("ffn_kernel") + k_ffn().text() + attn.attn_table()
txt += kernel_header("down_kernel") + k_down().text() + down.down_table()
txt += kernel_header("red_kernel") + k_red().text()
txt += '.section .rodata,"a"\n' + kernel_desc("ffn_kernel", 256, 256) + kernel_desc("down_kernel", 216, 144) + kernel_desc("red_kernel", 128, 0)
open(sys.argv[1], "w").write(txt)
```

```python
from asmlib import *
from ffn_up import HB_STEPS, HB_R16, HB_SIZE, S_OFF, G1_OFF, P_OFF, FL_OFF, FL_SIZE, VM, f2u
import down2
LOG2E = 1.4426950408889634
S_SIZE = 32*6144

WR = 0; WSLOT = 24576
XBUF = 73728
PK = 73728
VI = 114688
WI = 139264
GW = 148480
SL = 150528
NSL = 8

def scatter_table():
    T = []
    for e in range(648):
        hh, rem = divmod(e, 324); d, f = divmod(rem, 18)
        c = 18*hh + d; part, fp = divmod(f, 9); j, i = fp >> 2, fp & 3
        slot = 16*j + 4*(2*hh + part) + i
        T.append(c*96 + slot*2)
    T += [4600]*(768-648)
    return T

TILE_UNITS = [[0,1,2,3],[4,5,6,7],[8,20,21,22],[10,11,12,13],[14,15,16,17],[18,23,24,25],[26,27,28,28]]

def gen_attn(b, opt):
    sXs, sWs, sPh, sGw, sHB, sS = 8, 12, 16, 20, 24, 28
    sx, smt, sw = 32, 34, 36
    sXr = 38
    sWb = 42; sM0 = 43; sT = 44; sT2 = 45; sP = 46; sXm0 = 47; sXm0s = 48
    sAt = 49; sDbg = 50; sTab = 52; sWd = 56
    sHo = 88
    sL = 58
    mG2, mCv, mG1 = 76, 74, 78
    L, G, M = 1, 2, 3
    t0, t1, t2, t3 = 4, 5, 6, 7
    vWd = 8; vXd = 9; vXl = 11
    vWa = 15
    vG = 29
    vWi = 33; vPKw = 34; vVw = 35
    vKA = 38; vKB = 39; vAt = 40; vCa = 41; vCc = 42; vHo = 43; vLo = 44
    vSc = 45
    vF = 48
    ACC = 76
    vXov = 188
    vQ0 = 220
    u0, u1, u2, u3 = 244, 245, 246, 247
    def X(r, bb):
        ph = bb*4 + r
        return a(4*ph, 4) if ph < 64 else v(vXov + 4*(ph-64), 4)
    def acc(tau, r): return ACC + (tau*4 + r)*4
    def stamp(lane):
        if opt.get("stamps"):
            b("s_memtime s[92:93]"); b("s_waitcnt lgkmcnt(0)"); b(f"v_writelane_b32 v255, s92, {lane}")

    def pstamp(lane):
        if opt.get("stamps"):
            b("s_memtime s[92:93]"); b("s_waitcnt lgkmcnt(0)"); b(f"s_mul_i32 s98, s{sP}, 16"); b(f"s_add_u32 m0, s98, {lane}"); b("s_nop 1"); b(f"v_writelane_b32 v255, s92, m0")
    b("s_load_dwordx4 s[60:63], s[0:1], 0")
    b("s_load_dwordx2 s[64:65], s[0:1], 16")
    b("s_load_dwordx2 s[66:67], s[0:1], 64")
    b(f"s_load_dwordx4 s[68:71], s[0:1], 80")
    b(f"s_getpc_b64 s[{sTab}:{sTab+1}]")
    b.label("L_at_pc")
    b(f"s_add_u32 s{sTab}, s{sTab}, L_at_table-L_at_pc")
    b(f"s_addc_u32 s{sTab+1}, s{sTab+1}, 0")
    b(f"s_and_b32 s{sx}, s2, 7")
    b(f"s_lshr_b32 s{smt}, s2, 3")
    b(f"s_sub_u32 s{smt}, s{smt}, 24")
    b(f"v_lshrrev_b32 v{t0}, 6, v0")
    b(f"v_and_b32 v{L}, 63, v0")
    b(f"v_readfirstlane_b32 s{sw}, v{t0}")
    b(f"v_lshrrev_b32 v{G}, 4, v{L}")
    b(f"v_and_b32 v{M}, 15, v{L}")
    b(f"v_lshlrev_b32 v{vHo}, 4, v{L}")
    for o in range(2):
        b(f"v_lshrrev_b32 v{t0}, 3, v{L}")
        b(f"v_add_u32 v{t0}, {8*o}, v{t0}")
        b(f"v_mul_u32_u24 v{vXd+o}, 1152, v{t0}")
        b(f"v_and_b32 v{t0}, 7, v{L}")
        b(f"v_add_u32 v{t1}, {4*o}, v{G}")
        b(f"v_xor_b32 v{t0}, v{t0}, v{t1}")
        b(f"v_lshl_add_u32 v{vXd+o}, v{t0}, 4, v{vXd+o}")
    b(f"s_lshl_b32 s{sXm0}, s{sw}, 14")
    b(f"s_add_u32 s{sXm0}, s{sXm0}, {XBUF}")
    for q in range(2):
        b(f"v_lshrrev_b32 v{t0}, 1, v{M}")
        b(f"v_add_u32 v{t1}, {4*q}, v{G}")
        b(f"v_xor_b32 v{t0}, v{t0}, v{t1}")
        b(f"v_lshlrev_b32 v{t0}, 4, v{t0}")
        b(f"v_lshl_add_u32 v{t0}, v{M}, 7, v{t0}")
        b(f"v_add_u32 v{vXl+q}, s{sXm0}, v{t0}")
    b("s_waitcnt lgkmcnt(0)")
    srd(b, sXs, 60, 2359296)
    srd(b, sWs, 62, 1990656)
    b(f"s_lshl_b32 s{sT}, s{smt}, 2")
    b(f"s_add_u32 s{sT}, s{sT}, s{sw}")
    b(f"s_mul_i32 s{sXr}, s{sT}, {64*1152}")
    for r in range(1, 4): b(f"s_add_u32 s{sXr+r}, s{sXr}, {r*16*1152}")
    b(f"s_mul_i32 s{sHo}, s{sT}, {4*HB_R16}")
    for r in range(1, 4): b(f"s_add_u32 s{sHo+r}, s{sHo}, {r*HB_R16}")

    def slot_m0(sl, o):
        return f"s_add_u32 m0, s{sXm0}, {sl*2048 + o*1024}"
    def xdma(jx):
        kap, r = jx >> 2, jx & 3
        sl = jx % NSL
        return [slot_m0(sl, 0),
                f"s_add_u32 s{sT}, s{sXr+r}, {kap*128}",
                f"buffer_load_dwordx4 v{vXd}, s[{sXs}:{sXs+3}], s{sT} offen lds",
                slot_m0(sl, 1),
                "s_nop 0",
                f"buffer_load_dwordx4 v{vXd+1}, s[{sXs}:{sXs+3}], s{sT} offen lds"]
    def xread(jx):
        kap, r = jx >> 2, jx & 3
        sl = jx % NSL
        out = []
        for q in range(2):
            out.append(f"ds_read_b128 {X(r, 2*kap+q)}, v{vXl+q} offset:{sl*2048}")
        return out
    vm = VM()
    if opt.get("pfx", 0):
        b(f"s_mul_i32 s{sT}, s{smt}, 294912")
        b(f"s_mul_i32 s{sT2}, s{sw}, 18432")
        b(f"s_add_u32 s{sT}, s{sT}, s{sT2}")
        b(f"s_add_u32 s{sT}, s{sT}, {3*73728}")
        b(f"v_lshlrev_b32 v{t0}, 7, v{L}")
        b(f"buffer_load_dword v241, v{t0}, s[{sXs}:{sXs+3}], s{sT} offen"); vm.issue()
        b(f"s_add_u32 s{sT}, s{sT}, 8192")
        b(f"buffer_load_dword v242, v{t0}, s[{sXs}:{sXs+3}], s{sT} offen"); vm.issue()
        b(f"s_add_u32 s{sT}, s{sT}, 8192")
        b(f"v_mov_b32 v{t1}, 0x7f000000")
        b(f"v_cmp_gt_u32 vcc, 16, v{L}")
        b("s_nop 1")
        b(f"v_cndmask_b32 v{t0}, v{t1}, v{t0}, vcc")
        b(f"buffer_load_dword v243, v{t0}, s[{sXs}:{sXs+3}], s{sT} offen"); vm.issue()
    if opt.get("apf", 0):
        b(f"s_mul_i32 s{sT}, s{smt}, 72")
        b(f"s_mul_i32 s{sT2}, s{sw}, 18")
        b(f"s_add_u32 s{sT}, s{sT}, s{sT2}")
        b(f"s_mul_i32 s{sT}, s{sT}, 3456")
        b(f"s_mul_i32 s{sT2}, s{sx}, 144")
        b(f"s_add_u32 s{sT}, s{sT}, s{sT2}")
        for k in range(2):
            b(f"v_add_u32 v{t0}, {64*k}, v{L}")
            b(f"v_mul_u32_u24 v{t1}, 171, v{t0}")
            b(f"v_lshrrev_b32 v{t1}, 10, v{t1}")
            b(f"v_mul_u32_u24 v{t2}, 6, v{t1}")
            b(f"v_sub_u32 v{t2}, v{t0}, v{t2}")
            b(f"v_mul_u32_u24 v{t1}, 3456, v{t1}")
            b(f"v_lshrrev_b32 v{t3}, 1, v{t2}")
            b(f"v_mul_u32_u24 v{t3}, 1152, v{t3}")
            b(f"v_add_u32 v{t1}, v{t1}, v{t3}")
            b(f"v_and_b32 v{t2}, 1, v{t2}")
            b(f"v_mul_u32_u24 v{t2}, 140, v{t2}")
            b(f"v_add_u32 v{t1}, v{t1}, v{t2}")
            if k == 1:
                b(f"v_mov_b32 v{t2}, 0x7f000000")
                b(f"v_cmp_gt_u32 vcc, 108, v{t0}")
                b("s_nop 1")
                b(f"v_cndmask_b32 v{t1}, v{t2}, v{t1}, vcc")
            b(f"buffer_load_dword v{242+k}, v{t1}, s[{sWs}:{sWs+3}], s{sT} offen"); vm.issue()
    xid = {}
    def issue_x(jx):
        b.ext(xdma(jx)); vm.issue(); xid[jx] = vm.issue()
    for jx in range(4): issue_x(jx)
    b(f"s_lshr_b32 s{sT2}, s{sw}, 1")
    b(f"s_lshl_b32 s{sT2}, s{sT2}, 2")
    b(f"v_or_b32 v{t0}, s{sT2}, v{G}")
    b(f"v_lshlrev_b32 v{t0}, 1, v{t0}")
    b(f"v_xor_b32 v{t0}, v{t0}, v{M}")
    b(f"v_mul_u32_u24 v{t1}, 52, v{t0}")
    b(f"v_lshrrev_b32 v{t1}, 8, v{t1}")
    b(f"v_mul_u32_u24 v{t2}, 5, v{t1}")
    b(f"v_sub_u32 v{t2}, v{t0}, v{t2}")
    b(f"v_mul_u32_u24 v{vWd}, 3456, v{G}")
    b(f"v_mul_u32_u24 v{t1}, 1152, v{t1}")
    b(f"v_add_u32 v{vWd}, v{vWd}, v{t1}")
    b(f"v_lshl_add_u32 v{vWd}, v{t2}, 4, v{vWd}")
    b(f"s_mul_i32 s{sWb}, s{sw}, {4*3456}")
    b(f"s_mul_i32 s{sT2}, s{sx}, 144")
    b(f"s_add_u32 s{sWb}, s{sWb}, s{sT2}")
    b(f"s_lshl_b32 s{sM0}, s{sw}, 10")
    def wdma(sig, kk):
        return [f"s_add_u32 m0, s{sM0}, {WR + (sig % 3)*WSLOT + kk*4096}",
                f"s_add_u32 s{sT}, s{sWd}, {kk*16*3456}",
                f"buffer_load_dwordx4 v{vWd}, s[{sWs}:{sWs+3}], s{sT} offen lds"]
    b(f"s_mov_b32 s{sWd}, s{sWb}")
    for kk in range(6): b.ext(wdma(0, kk)); w0_last = vm.issue()
    b(f"s_add_u32 s{sWd}, s{sWd}, {96*3456}")
    for jx in range(4, NSL): issue_x(jx)
    for kk in range(6): b.ext(wdma(1, kk)); w1_last = vm.issue()
    b(f"s_add_u32 s{sWd}, s{sWd}, {96*3456}")
    srd(b, sGw, 66, 1152)
    b(f"s_and_b32 s{sT}, s{sw}, 1")
    b(f"s_lshl_b32 s{sT}, s{sT}, 10")
    b(f"v_lshlrev_b32 v{t0}, 4, v{L}")
    b(f"v_add_u32 v{t0}, s{sT}, v{t0}")
    b(f"s_add_u32 m0, s{sT}, {GW}")
    b("s_nop 0")
    b(f"buffer_load_dwordx4 v{t0}, s[{sGw}:{sGw+3}], 0 offen lds"); vm.issue()
    srd(b, sPh, 64, 20736)
    srd(b, sHB, 70, HB_SIZE)
    b(f"s_add_u32 s{sS}, s70, {S_OFF}")
    b(f"s_addc_u32 s{sS+1}, s71, 0")
    b(f"s_and_b32 s{sS+1}, s{sS+1}, 0xffff")
    b(f"s_mov_b32 s{sS+2}, {S_SIZE + FL_SIZE}")
    b(f"s_mov_b32 s{sS+3}, 0x00020000")
    b(f"s_mov_b32 s{sDbg}, s68"); b(f"s_mov_b32 s{sDbg+1}, s69")
    b(f"s_mov_b32 s{sL}, 0x{f2u(LOG2E):08x}"); b(f"s_mov_b32 s{sL+1}, 0x{f2u(LOG2E):08x}")
    b(f"s_lshl_b32 s{sT}, s{smt}, 3")
    b(f"s_add_u32 s{sT}, s{sT}, s{sx}")
    b(f"s_mul_i32 s{sT}, s{sT}, 3392")
    b(f"v_lshlrev_b32 v{t0}, 4, v0")
    for i in range(4): b(f"v_mov_b32 v{u0+i}, 0")
    b(f"v_mov_b32 v{t1}, 0x7f000000")
    b(f"v_cmp_gt_u32 vcc, 212, v0")
    b("s_nop 1")
    b(f"v_cndmask_b32 v{t0}, v{t1}, v{t0}, vcc")
    b(f"buffer_store_dwordx4 {v(u0,4)}, v{t0}, s[{sS}:{sS+3}], s{sT} offen sc0 sc1"); vm.issue()
    b(f"v_bfe_u32 v{t0}, v{L}, 2, 2")
    b(f"v_and_b32 v{t1}, 1, v{G}")
    b(f"v_lshl_add_u32 v{t1}, v{t1}, 2, v{t0}")
    b(f"v_lshlrev_b32 v{t1}, 1, v{t1}")
    b(f"v_lshl_add_u32 v{t0}, v{G}, 3, v{t0}")
    b(f"v_lshlrev_b32 v{t0}, 8, v{t0}")
    b(f"v_and_b32 v{t2}, 3, v{L}")
    b(f"v_lshlrev_b32 v{t2}, 3, v{t2}")
    for tau in range(7):
        u = TILE_UNITS[tau]
        pk = u[0] | (u[1] << 8) | (u[2] << 16) | (u[3] << 24)
        b(f"v_mov_b32 v{t3}, 0x{pk:08x}")
        b(f"v_lshrrev_b32 v{t3}, v{t2}, v{t3}")
        b(f"v_and_b32 v{t3}, 0xff, v{t3}")
        b(f"v_lshrrev_b32 v{vWa+tau}, 1, v{t3}")
        b(f"v_xor_b32 v{vWa+tau}, v{vWa+tau}, v{t1}")
        b(f"v_lshl_add_u32 v{vWa+tau}, v{vWa+tau}, 4, v{t0}")
        b(f"v_and_b32 v{t3}, 1, v{t3}")
        b(f"v_lshl_add_u32 v{vWa+tau}, v{t3}, 3, v{vWa+tau}")
        b(f"v_add_u32 v{vWa+7+tau}, {2*WSLOT}, v{vWa+tau}")
    b(f"v_bfe_u32 v{t0}, v{L}, 2, 2")
    b(f"v_lshl_add_u32 v{t0}, v{G}, 2, v{t0}")
    b(f"v_and_b32 v{t2}, 3, v{L}")
    b(f"v_mul_u32_u24 v{vWi}, 96, v{t0}")
    b(f"v_lshl_add_u32 v{vWi}, v{t2}, 3, v{vWi}")
    b(f"v_add_u32 v{vWi}, {WI}, v{vWi}")
    b(f"s_lshr_b32 s{sT}, s{sw}, 1")
    b(f"s_and_b32 s{sT2}, s{sw}, 1")
    b(f"s_lshl_b32 s72, s{sT}, 2")
    b(f"v_add_u32 v{t1}, s72, v{t2}")
    b(f"s_add_u32 s72, s72, 4")
    b(f"v_mov_b32 v{t3}, 9")
    b(f"v_mov_b32 v{vKB}, s72")
    b(f"v_cmp_eq_u32 vcc, 0, v{t2}")
    b("s_nop 1")
    b(f"v_cndmask_b32 v{t3}, v{t3}, v{vKB}, vcc")
    b(f"s_cmp_eq_u32 s{sT2}, 0")
    b(f"s_cselect_b64 vcc, -1, 0")
    b("s_nop 1")
    b(f"v_cndmask_b32 v{t1}, v{t3}, v{t1}, vcc")
    b(f"v_mul_u32_u24 v{vKA}, 96, v{t0}")
    b(f"v_lshl_add_u32 v{vKA}, v{t1}, 3, v{vKA}")
    b(f"v_add_u32 v{vKA}, {VI}, v{vKA}")
    b(f"s_mul_i32 s72, s{sT}, 80")
    b(f"v_mul_u32_u24 v{vKB}, 160, v{t0}")
    b(f"v_lshl_add_u32 v{vKB}, v{t2}, 3, v{vKB}")
    b(f"v_add_u32 v{vKB}, s72, v{vKB}")
    b(f"v_add_u32 v{vKB}, {PK}, v{vKB}")
    b(f"v_mul_u32_u24 v{vAt}, 768, v{G}")
    b(f"v_lshl_add_u32 v{vAt}, v{M}, 2, v{vAt}")
    b(f"s_mul_i32 s73, s{sT}, 6144")
    b(f"s_mul_i32 s72, s{sT2}, 3072")
    b(f"s_add_u32 s73, s73, s72")
    b(f"s_lshl_b32 s72, s{sw}, 6")
    b(f"v_add_u32 v{t0}, s72, v{M}")
    b(f"v_mul_u32_u24 v{vPKw}, 160, v{t0}")
    b(f"v_mul_u32_u24 v{t2}, 40, v{G}")
    b(f"v_add_u32 v{vPKw}, v{vPKw}, v{t2}")
    b(f"v_add_u32 v{vPKw}, {PK}, v{vPKw}")
    b(f"v_mul_u32_u24 v{t2}, 96, v{t0}")
    b(f"v_add_u32 v{t2}, {VI}, v{t2}")
    for k, (add, cmpv) in enumerate(((-1, 0), (2, 0), (6, 3))):
        b(f"v_add_u32 v{t3}, {add}, v{G}")
        b(f"v_cmp_eq_u32 vcc, {cmpv}, v{G}")
        b(f"v_mov_b32 v{vVw+k}, 10")
        b("s_nop 0")
        b(f"v_cndmask_b32 v{t3}, v{t3}, v{vVw+k}, vcc")
        b(f"v_lshl_add_u32 v{vVw+k}, v{t3}, 3, v{t2}")
    b(f"v_lshrrev_b32 v{t0}, 1, v{G}")
    b(f"v_and_b32 v{t1}, 1, v{G}")
    b(f"v_lshl_add_u32 v{t2}, v{t0}, 1, v{M}")
    b(f"v_mul_u32_u24 v{vCa}, 192, v{t2}")
    b(f"v_mul_u32_u24 v{t2}, 6144, v{t0}")
    b(f"v_add_u32 v{vCa}, v{vCa}, v{t2}")
    b(f"v_mul_u32_u24 v{t2}, 80, v{t1}")
    b(f"v_add_u32 v{vCa}, v{vCa}, v{t2}")
    b(f"v_and_b32 v{t2}, 3, v{M}")
    b(f"v_lshrrev_b32 v{t3}, 2, v{M}")
    b(f"v_cmp_gt_u32 vcc, 2, v{t2}")
    b("s_nop 1")
    b(f"v_cndmask_b32 v{vCc}, v{t3}, v{t2}, vcc")
    b(f"v_lshl_add_u32 v{t3}, v{t3}, 1, v{t2}")
    b(f"v_add_u32 v{t3}, 14, v{t3}")
    b(f"v_mov_b32 v{t2}, 20")
    b(f"v_cndmask_b32 v{t3}, v{t3}, v{t2}, vcc")
    b(f"v_cmp_eq_u32 s[{mCv}:{mCv+1}], v{vCc}, v{t0}")
    b(f"v_min_u32 v{vCc}, 1, v{vCc}")
    b(f"v_mul_u32_u24 v{vCc}, 6144, v{vCc}")
    b(f"v_mul_u32_u24 v{t3}, 192, v{t3}")
    b(f"v_add_u32 v{vCc}, v{vCc}, v{t3}")
    b(f"v_mul_u32_u24 v{t2}, 80, v{t1}")
    b(f"v_add_u32 v{vCc}, v{vCc}, v{t2}")
    b(f"v_cmp_gt_u32 s[{mG2}:{mG2+1}], 2, v{G}")
    b(f"v_cmp_eq_u32 s[{mG1}:{mG1+1}], 1, v{G}")
    b(f"v_lshlrev_b32 v{vLo}, 4, v{M}")
    b(f"v_lshl_add_u32 v{vLo}, v{G}, 2, v{vLo}")
    b(f"v_lshlrev_b32 v{t0}, 1, v0")
    for n in range(3):
        b(f"global_load_ushort v{vSc+n}, v{t0}, s[{sTab}:{sTab+1}] offset:{512*n}"); vm.issue()
    tab_last = vm.n - 1
    b(f"s_mul_i32 s{sT}, s{sx}, {1296*2}")
    b(f"v_lshlrev_b32 v{t1}, 1, v0")
    b(f"v_mov_b32 v{t3}, 0x7f000000")
    b(f"v_cmp_gt_u32 vcc, {648-512}, v0")
    b(f"v_add_u32 v{t2}, 1024, v{t1}")
    b(f"v_cndmask_b32 v{t2}, v{t3}, v{t2}, vcc")
    for p in range(2):
        if p: b(f"s_add_u32 s{sT}, s{sT}, 1296")
        b(f"buffer_load_ushort v{248+3*p}, v{t1}, s[{sPh}:{sPh+3}], s{sT} offen"); vm.issue()
        b(f"buffer_load_ushort v{249+3*p}, v{t1}, s[{sPh}:{sPh+3}], s{sT} offen offset:512"); vm.issue()
        b(f"buffer_load_ushort v{250+3*p}, v{t2}, s[{sPh}:{sPh+3}], s{sT} offen"); phi_last = vm.issue()
    b(f"v_mul_u32_u24 v{t3}, 36, v0")
    b(f"v_add_u32 v{t3}, {WI}, v{t3}")
    for i in range(9): b(f"ds_write_b32 v{t3}, v{u0} offset:{4*i}")
    b(f"s_waitcnt vmcnt({vm.wait_for(xid[3])})")
    for jx in range(4): b.ext(xread(jx))
    b(f"s_waitcnt vmcnt({vm.wait_for(w0_last)})")
    b("s_barrier")
    stamp(1)
    def rd(tau, bb):
        sig, q = bb // 3, bb % 3
        sl = sig % 3
        ad = (vWa + tau) if sl < 2 else (vWa + 7 + tau)
        off = (sl*WSLOT if sl < 2 else 0) + q*8192
        d = vF + tau*4
        return [f"ds_read_b64_tr_b16 {v(d,2)}, v{ad} offset:{off}",
                f"ds_read_b64_tr_b16 {v(d+2,2)}, v{ad} offset:{off+1024}"]
    D = 3
    for tau in range(D): b.ext(rd(tau, 0))
    b(f"s_mov_b32 s{sP}, 0")
    b(".p2align 6")
    b.label("L_at_pair")
    prev_read = [0, 1, 2, 3]
    for bb in range(18):
        sig, q = bb // 3, bb % 3
        kap1 = (bb >> 1) + 1
        xr = [4*kap1 + 2*(bb & 1), 4*kap1 + 2*(bb & 1) + 1] if kap1 <= 8 else []
        refill = [jx + NSL for jx in prev_read if jx + NSL < 36]
        if xr or refill:
            b(f"s_cmp_eq_u32 s{sP}, 0")
            b(f"s_cbranch_scc0 L_at_nx{bb}")
            if refill:
                b("s_waitcnt lgkmcnt(0)")
                for jx in refill: issue_x(jx)
            if xr:
                b(f"s_waitcnt vmcnt({vm.wait_for(xid[xr[-1]])})")
                for jx in xr: b.ext(xread(jx))
            b("s_waitcnt lgkmcnt(0)")
            b.label(f"L_at_nx{bb}")
        prev_read = xr
        dm = []
        if q < 2:
            tgt = sig + 2
            if tgt == 6 and q == 0: dm.append(f"s_add_u32 s{sWd}, s{sWb}, 72")
            for kk in range(3*q, 3*q + 3): dm += wdma(tgt % 6, kk)
            if q == 1: dm.append(f"s_add_u32 s{sWd}, s{sWd}, {96*3456}")
            for _ in range(3): vm.issue()
        for tau in range(7):
            if q == 2 and tau == 7 - D:
                b(f"s_waitcnt vmcnt({18 if sig == 0 else 6})")
                b("s_barrier")
            b(f"s_waitcnt lgkmcnt({2*(D-1)})")
            nt_ = tau + D
            fill = rd(nt_, bb) if nt_ < 7 else rd(nt_ - 7, (bb + 1) % 18)
            if dm and tau >= 1:
                n = 3 if tau < 6 else len(dm)
                fill = fill + dm[:n]; dm = dm[n:]
            for r in range(4):
                C = "0" if bb == 0 else v(acc(tau,r),4)
                b(f"v_mfma_f32_16x16x32_bf16 {v(acc(tau,r),4)}, {v(vF+tau*4,4)}, {X(r,bb)}, {C}")
                n = (len(fill) + (3-r)) // (4-r)
                for _ in range(n):
                    if fill: b(fill.pop(0))
        assert not dm
    b(f"s_add_u32 s{sWb}, s{sWb}, 72")
    pstamp(2)

    A = lambda t: ACC + 16*t
    b(f"s_cmp_eq_u32 s{sP}, 0")
    b("s_cbranch_scc0 L_at_notfirst")
    for p in range(2):
        for n in range(3):
            b(f"v_add_u32 v{t0}, {WI + p*4608}, v{vSc+n}")
            b(f"ds_write_b16 v{t0}, v{248+3*p+n}")
    b(f"s_cmp_eq_u32 s{sw}, 0")
    b("s_cbranch_scc0 L_at_nosig0")
    b(f"v_mov_b32 v{t0}, 0"); b(f"v_mov_b32 v{t1}, 1")
    b("s_mov_b64 s[80:81], exec")
    b("s_mov_b64 exec, 1")
    b(f"global_atomic_add v{t0}, v{t1}, s[{sDbg}:{sDbg+1}]")
    b("s_mov_b64 exec, s[80:81]")
    b.label("L_at_nosig0")
    b("s_waitcnt lgkmcnt(0)")
    b("s_barrier")
    b(f"v_mul_u32_u24 v{t3}, 96, v0")
    b(f"v_add_u32 v{t3}, {VI+72}, v{t3}")
    b(f"v_mov_b32 v{u0}, 0x3f80"); b(f"v_mov_b32 v{u1}, 0")
    b(f"ds_write_b64 v{t3}, {v(u0,2)}")
    b.label("L_at_notfirst")
    pstamp(3)
    b("s_nop 4")
    for r in range(4):
        def pk(dst, tau):
            s_ = acc(tau, r)
            b(f"v_cvt_pk_bf16_f32 v{dst}, v{s_}, v{s_+1}")
            b(f"v_cvt_pk_bf16_f32 v{dst+1}, v{s_+2}, v{s_+3}")
        pk(acc(0,r), 0); pk(acc(0,r)+2, 1); pk(acc(2,r), 2)
        pk(acc(3,r), 3); pk(acc(3,r)+2, 4); pk(acc(5,r), 5); pk(acc(6,r), 6)
    pA0 = [A(1)+4*j for j in range(3)]; pA1 = [A(1)+12, A(1)+14, A(4)]
    def read_phiA(addr):
        for j in range(3):
            b(f"ds_read_b64_tr_b16 {v(pA0[j],2)}, v{addr} offset:{32*j}")
            b(f"ds_read_b64_tr_b16 {v(pA0[j]+2,2)}, v{addr} offset:{32*j + 16*96}")
            b(f"ds_read_b64_tr_b16 {v(pA1[j],2)}, v{addr} offset:{32*j + 32*96}")
    b(f"s_mul_i32 s{sT}, s{sP}, 4608")
    b(f"v_add_u32 v{u0}, s{sT}, v{vWi}")
    read_phiA(u0)
    b("s_waitcnt lgkmcnt(6)")
    for r in range(4):
        b(f"ds_write_b64 v{vVw+0}, {v(acc(2,r),2)} offset:{r*16*96}")
        b(f"ds_write_b64 v{vVw+1}, {v(acc(5,r),2)} offset:{r*16*96}")
        if r == 1: b("s_waitcnt lgkmcnt(8)")
        b(f"ds_write_b64 v{vVw+2}, {v(acc(6,r),2)} offset:{r*16*96}")
    b(f"s_cmp_eq_u32 s{sP}, 0")
    b("s_cbranch_scc0 L_at_sq1")
    for r in range(4):
        for i in range(4): b(f"v_mov_b32 v{vQ0+6*r+i}, v{acc(0,r)+i}")
        for i in range(2): b(f"v_mov_b32 v{vQ0+6*r+4+i}, v{acc(2,r)+i}")
    b("s_branch L_at_sq2")
    b.label("L_at_sq1")
    for r in range(4):
        for i in range(4): b(f"v_mov_b32 v{vF+6*r+i}, v{acc(0,r)+i}")
        for i in range(2): b(f"v_mov_b32 v{vF+6*r+4+i}, v{acc(2,r)+i}")
    b.label("L_at_sq2")
    b("s_waitcnt lgkmcnt(0)")
    P0, P1 = A(0), A(6)
    def phi_mfma(B0, B1):
        for Pd, (f4, f2) in ((P0, B0), (P1, B1)):
            for j in range(3):
                b(f"v_mfma_f32_16x16x32_bf16 {v(Pd+4*j,4)}, {v(pA0[j],4)}, {v(f4,4)}, 0")
        for Pd, (f4, f2) in ((P0, B0), (P1, B1)):
            for j in range(3):
                b(f"v_mfma_f32_16x16x16_bf16 {v(Pd+4*j,4)}, {v(pA1[j],2)}, {v(f2,2)}, {v(Pd+4*j,4)}")
    def call_sm():
        b("s_getpc_b64 s[82:83]")
        b(f"s_add_u32 s82, s82, L_at_sm2-.-4+8" if False else "s_nop 0")
    def call():
        b(f"s_swappc_b64 s[84:85], s[86:87]")
    b("s_getpc_b64 s[86:87]")
    b.label("L_at_pc2")
    b("s_add_u32 s86, s86, L_at_sm2-L_at_pc2")
    b("s_addc_u32 s87, s87, 0")
    for rp in range(2):
        r0, r1 = 2*rp, 2*rp+1
        phi_mfma((acc(3,r0), acc(5,r0)), (acc(3,r1), acc(5,r1)))
        call()
        for Rr, r in ((P0, r0), (P1, r1)):
            for i in range(5):
                b(f"ds_write_b64 v{vPKw}, {v(Rr+2*i,2)} offset:{r*2560 + 8*i}")
    pstamp(10)
    b(f"s_cmp_eq_u32 s{sP}, 0")
    b("s_cbranch_scc0 L_at_nopoll0")
    b(f"s_cmp_eq_u32 s{sw}, 0")
    b("s_cbranch_scc0 L_at_nopoll0")
    b(f"v_mov_b32 v{u0}, 0")
    b.label("L_at_poll0")
    b(f"global_load_dword v{u1}, v{u0}, s[{sDbg}:{sDbg+1}] sc1")
    b("s_waitcnt vmcnt(0)")
    b(f"v_readfirstlane_b32 s{sT}, v{u1}")
    b(f"s_cmp_ge_u32 s{sT}, 64")
    b("s_cbranch_scc1 L_at_nopoll0")
    b("s_sleep 2")
    b("s_branch L_at_poll0")
    b.label("L_at_nopoll0")
    b("s_waitcnt lgkmcnt(0)")
    b("s_barrier")
    pstamp(11)
    for s_ in range(8):
        if s_ in (4,): b("s_waitcnt lgkmcnt(6)")
        b(f"ds_read_b64_tr_b16 {v(A(0)+4*s_,2)}, v{vKA} offset:{s_*3072}")
        b(f"ds_read_b64_tr_b16 {v(A(0)+4*s_+2,2)}, v{vKA} offset:{s_*3072+1536}")
    def rdB(ph):
        base = A(2) if ph % 2 == 0 else A(4)
        for s_ in range(8):
            if s_ % 3 == 0: b("s_waitcnt lgkmcnt(8)")
            b(f"ds_read_b64_tr_b16 {v(base+4*s_,2)}, v{vKB} offset:{s_*5120 + ph*32}")
            b(f"ds_read_b64_tr_b16 {v(base+4*s_+2,2)}, v{vKB} offset:{s_*5120 + 2560 + ph*32}")
    def mmB(ph):
        base = A(2) if ph % 2 == 0 else A(4)
        for s_ in range(8):
            C = "0" if s_ == 0 else v(A(6)+4*ph,4)
            b(f"v_mfma_f32_16x16x32_bf16 {v(A(6)+4*ph,4)}, {v(A(0)+4*s_,4)}, {v(base+4*s_,4)}, {C}")
    rdB(0); rdB(1)
    b("s_waitcnt lgkmcnt(15)")
    b("s_waitcnt lgkmcnt(0)")
    mmB(0)
    rdB(2)
    mmB(1)
    b("s_waitcnt lgkmcnt(0)")
    b("s_barrier")
    mmB(2)
    b(f"s_lshl_b32 s{sT}, s{sx}, 1")
    b(f"s_add_u32 s{sT}, s{sT}, s{sP}")
    b(f"s_mul_i32 s{sT}, s{sT}, 12288")
    b(f"s_add_u32 s{sAt}, s{sT}, s73")
    b("s_nop 7")
    for ph in range(3):
        for i in range(4):
            b(f"buffer_atomic_add_f32 v{A(6)+4*ph+i}, v{vAt}, s[{sS}:{sS+3}], s{sAt} offen offset:{i*192 + ph*64}")
    pstamp(4)
    b(f"s_add_u32 s{sP}, s{sP}, 1")
    b(f"s_cmp_lt_u32 s{sP}, 2")
    b("s_cbranch_scc1 L_at_pair")
    b("s_waitcnt vmcnt(0)")
    b("s_barrier")
    b(f"s_cmp_eq_u32 s{sw}, 0")
    b("s_cbranch_scc0 L_at_nosig1")
    b(f"v_mov_b32 v{u0}, {FL_OFF + down2.DB_KV*128}"); b(f"v_mov_b32 v{u1}, 1")
    b("s_mov_b64 s[80:81], exec")
    b("s_mov_b64 exec, 1")
    b(f"global_atomic_add v{u0}, v{u1}, s[70:71]")
    b("s_mov_b64 exec, s[80:81]")
    b.label("L_at_nosig1")
    stamp(5)
    b(f"v_lshlrev_b32 v{t0}, 4, v{G}")
    b(f"v_add_u32 v{t0}, {GW}, v{t0}")
    GD = A(6)
    for rnd in range(3):
        for k in range(6):
            bb = 6*rnd + k
            if rnd == 2 and k == 0: b("s_waitcnt lgkmcnt(6)")
            b(f"ds_read_b128 {v(A(rnd*2)+4*k,4)}, v{t0} offset:{64*bb}")
    for rnd in range(3):
        b(f"s_waitcnt lgkmcnt({[12,6,0][rnd]})")
        for k in range(6):
            bb = 6*rnd + k
            for r in range(4):
                C = "0" if bb == 0 else v(GD+4*r,4)
                b(f"v_mfma_f32_16x16x32_bf16 {v(GD+4*r,4)}, {v(A(rnd*2)+4*k,4)}, {X(r,bb)}, {C}")
    b("s_nop 7")
    for r in range(4): b(f"v_mul_f32 v{vG+r}, 0x{f2u(-LOG2E):08x}, v{GD+4*r}")
    for r in range(4): b(f"v_exp_f32 v{vG+r}, v{vG+r}")
    for r in range(4): b(f"v_add_f32 v{vG+r}, 1.0, v{vG+r}")
    for r in range(4): b(f"v_rcp_f32 v{vG+r}, v{vG+r}")
    b(f"s_cmp_eq_u32 s{sx}, 0")
    b("s_cbranch_scc0 L_at_nog1")
    b(f"s_lshl_b32 s{sT}, s{smt}, 2")
    b(f"s_add_u32 s{sT}, s{sT}, s{sw}")
    b(f"s_lshl_b32 s{sT}, s{sT}, 8")
    b(f"v_lshlrev_b32 v{t0}, 2, v{M}")
    b(f"v_add_u32 v{t0}, s{sT}, v{t0}")
    b(f"v_add_u32 v{t0}, {G1_OFF}, v{t0}")
    b(f"v_cmp_gt_u32 vcc, 16, v{L}")
    b("s_and_saveexec_b64 s[80:81], vcc")
    b("s_cbranch_execz L_at_nog1b")
    for r in range(4):
        b(f"v_sub_f32 v{GD+r}, 1.0, v{vG+r}")
        b(f"global_store_dword v{t0}, v{GD+r}, s[70:71] offset:{64*r} sc1")
    b.label("L_at_nog1b")
    b("s_mov_b64 exec, s[80:81]")
    b.label("L_at_nog1")
    def qsm(p):
        b(f"v_add_u32 v{u0}, {4608*p}, v{vWi}")
        read_phiA(u0)
        b("s_waitcnt lgkmcnt(0)")
        Q = vQ0 if p == 0 else vF
        for rp in range(2):
            r0, r1 = 2*rp, 2*rp+1
            phi_mfma((Q+6*r0, Q+6*r0+4), (Q+6*r1, Q+6*r1+4))
            call()
            for Rr, r in ((P0, r0), (P1, r1)):
                for i in range(10): b(f"v_accvgpr_write_b32 a{48*p+12*r+i}, v{Rr+i}")
                b(f"v_accvgpr_write_b32 a{48*p+12*r+10}, 0")
                b(f"v_accvgpr_write_b32 a{48*p+12*r+11}, 0")
    qsm(0)
    stamp(7)
    b(f"s_cmp_eq_u32 s{sw}, 0")
    b("s_cbranch_scc0 L_at_nopoll1")
    b(f"v_mov_b32 v{u0}, {FL_OFF + down2.DB_KV*128}")
    b.label("L_at_poll1")
    b(f"global_load_dword v{u1}, v{u0}, s[70:71] sc1")
    b("s_waitcnt vmcnt(0)")
    b(f"v_readfirstlane_b32 s{sT}, v{u1}")
    b(f"s_cmp_ge_u32 s{sT}, 64")
    b("s_cbranch_scc1 L_at_nopoll1")
    b("s_sleep 2")
    b("s_branch L_at_poll1")
    b.label("L_at_nopoll1")
    b("s_barrier")
    stamp(6)
    b(f"s_mul_i32 s{sT2}, s{sx}, 24576")
    b(f"s_mul_i32 s{sT}, s{sw}, 6144")
    b(f"s_add_u32 s{sT2}, s{sT2}, s{sT}")
    for k in range(6):
        b(f"s_add_u32 m0, s{sT}, {k*1024}")
        b(f"s_add_u32 s72, s{sT2}, {k*1024}")
        b(f"buffer_load_dwordx4 v{vHo}, s[{sS}:{sS+3}], s72 offen sc1 lds")
    stamp(12)
    qsm(1)
    stamp(13)
    b("s_waitcnt vmcnt(0)")
    b("s_barrier")
    def raw_regs(p, kind):
        if kind == 0: return [vQ0+4*i for i in range(6)]
        return [vXov+4*i for i in range(6)]
    def sread(p):
        for kind, vo in ((0, vCa), (1, vCc)):
            q = raw_regs(p, kind)
            for k in range(6):
                s_, h = k >> 1, k & 1
                b(f"ds_read_b128 {v(q[k],4)}, v{vo} offset:{p*12288 + 32*s_ + 16*h}")
    FA = {0: A(0), 1: A(0)}
    DT = [A(4), A(6)]
    def cphase(p, rawab, rawc, first_wait, second_wait):
        F = A(0)
        sread(p)
        b(f"s_waitcnt lgkmcnt(6)")
        for s_ in range(3):
            for k in range(4):
                q0 = rawab[2*s_ + (k >> 1)] + 2*(k & 1)
                b(f"v_cvt_pk_bf16_f32 v{u0}, v{q0}, v{q0+1}")
                b(f"v_cndmask_b32 v{F+4*s_+k}, 0, v{u0}, s[{mG2}:{mG2+1}]")
                b(f"v_cndmask_b32 v{F+12+4*s_+k}, v{u0}, 0, s[{mG2}:{mG2+1}]")
        b(f"s_waitcnt lgkmcnt(0)")
        for s_ in range(3):
            for k in range(4):
                q0 = rawc[2*s_ + (k >> 1)] + 2*(k & 1)
                b(f"v_cvt_pk_bf16_f32 v{u0}, v{q0}, v{q0+1}")
                b(f"v_cndmask_b32 v{F+24+4*s_+k}, 0, v{u0}, s[{mCv}:{mCv+1}]")
        b(f"s_lshl_b32 s{sT}, s{sx}, 1")
        b(f"s_add_u32 s{sT}, s{sT}, {p}")
        b(f"s_add_u32 s{sT2}, s{sT}, 144")
        b(f"s_lshl_b32 s{sT2}, s{sT2}, 10")
        b(f"s_lshr_b32 s72, s{sT}, 3")
        b(f"s_add_u32 s72, s72, 160")
        b(f"s_lshl_b32 s72, s72, 10")
        b(f"s_and_b32 s82, s{sT}, 7")
        b(f"s_lshr_b32 s83, s82, 1")
        b(f"s_lshl_b32 s83, s83, 8")
        b(f"s_and_b32 s82, s82, 1")
        b(f"s_lshl_b32 s82, s82, 3")
        b(f"s_add_u32 s83, s83, s82")
        b(f"s_add_u32 s72, s72, s83")
        for rp in range(2):
            for q_, r in enumerate((2*rp, 2*rp+1)):
                for tl in range(3):
                    for s_ in range(3):
                        D_ = DT[q_] + 4*tl
                        C = "0" if s_ == 0 else v(D_,4)
                        b(f"v_mfma_f32_16x16x32_bf16 {v(D_,4)}, {v(F+12*tl+4*s_,4)}, {a(48*p+12*r+4*s_,4)}, {C}")
            b("s_nop 7")
            for q_, r in enumerate((2*rp, 2*rp+1)):
                D_ = DT[q_]; c_ = D_ + 8
                w0, w1, w2 = (u0, u1, u2) if q_ == 0 else (248, 249, 250)
                b(f"v_add_f32 v{w0}, 0x{f2u(1e-6):08x}, v{c_}")
                b(f"v_add_f32 v{w1}, 0x{f2u(1e-6):08x}, v{c_+1}")
            for q_, r in enumerate((2*rp, 2*rp+1)):
                w0, w1, w2 = (u0, u1, u2) if q_ == 0 else (248, 249, 250)
                b(f"v_rcp_f32 v{w0}, v{w0}")
                b(f"v_rcp_f32 v{w1}, v{w1}")
            b("s_nop 0")
            for q_, r in enumerate((2*rp, 2*rp+1)):
                D_ = DT[q_]; c_ = D_ + 8
                w0, w1, w2 = (u0, u1, u2) if q_ == 0 else (248, 249, 250)
                b(f"v_mul_f32 v{w0}, v{w0}, v{vG+r}")
                b(f"v_mul_f32 v{w1}, v{w1}, v{vG+r}")
                for i in range(4):
                    b(f"v_mul_f32 v{D_+i}, v{D_+i}, v{w0}")
                    b(f"v_mul_f32 v{D_+4+i}, v{D_+4+i}, v{w1}")
                b(f"v_cndmask_b32 v{w2}, v{w0}, v{w1}, s[{mG1}:{mG1+1}]")
                b(f"v_mul_f32 v{c_+2}, v{c_+2}, v{w2}")
                b(f"v_mul_f32 v{c_+3}, v{c_+3}, v{w2}")
                o = D_ + 12
                b(f"v_cvt_pk_bf16_f32 v{o}, v{D_}, v{D_+1}")
                b(f"v_cvt_pk_bf16_f32 v{o+1}, v{D_+2}, v{D_+3}")
                b(f"v_cvt_pk_bf16_f32 v{o+2}, v{D_+4}, v{D_+5}")
                b(f"v_cvt_pk_bf16_f32 v{o+3}, v{D_+6}, v{D_+7}")
                b(f"v_cvt_pk_bf16_f32 v{c_}, v{c_+2}, v{c_+3}")
                b(f"s_add_u32 s82, s{sHo+r}, s{sT2}")
                b(f"buffer_store_dwordx4 {v(o,4)}, v{vHo}, s[{sHB}:{sHB+3}], s82 offen sc1")
                b(f"s_add_u32 s82, s{sHo+r}, s72")
                b("s_mov_b64 s[80:81], exec")
                b(f"s_mov_b64 exec, s[{mG2}:{mG2+1}]")
                b(f"buffer_store_dword v{c_}, v{vLo}, s[{sHB}:{sHB+3}], s82 offen sc1")
                b("s_mov_b64 exec, s[80:81]")
            b("s_nop 1")
    cphase(0, raw_regs(0,0), raw_regs(0,1), 0, 0)
    stamp(14)
    cphase(1, raw_regs(1,0), raw_regs(1,1), 0, 0)
    b("s_waitcnt vmcnt(0)")
    stamp(8)
    if opt.get("merged"):
        b("s_barrier")
        b(f"s_cmp_eq_u32 s{sw}, 0")
        b("s_cbranch_scc0 L_at_nosig2")
        down2.signal_byte(b, 70, smt, down2.DB_O, u0, u1, sT, sT2)
        b.label("L_at_nosig2")
        b(f"s_lshl_b32 s30, s{smt}, 2")
        b(f"s_lshr_b32 s31, s{sx}, 1")
        b(f"s_add_u32 s30, s30, s31")
        b(f"s_and_b32 s31, s{sx}, 1")
        b(f"s_add_u32 s31, s31, 6")
    b("s_branch L_at_end")

    b.label("L_at_sm2")
    E0 = [A(2)+2*i for i in range(8)] + [A(0)+12]
    E1 = [A(4)+2+2*i for i in range(7)] + [A(6)+12, A(6)+14]
    inst = [(P0, E0, u0, u2), (P1, E1, 248, 250)]
    b("s_nop 6")
    for (P, E, c, s_) in inst:
        b(f"v_max3_f32 v{c}, v{P}, v{P+1}, v{P+2}")
        b(f"v_max3_f32 v{c+1}, -v{P}, -v{P+1}, -v{P+2}")
    for k in (3, 5, 7):
        for (P, E, c, s_) in inst:
            b(f"v_max3_f32 v{c}, v{c}, v{P+k}, v{P+k+1}")
            b(f"v_max3_f32 v{c+1}, v{c+1}, -v{P+k}, -v{P+k+1}")
    b("s_nop 0")
    for (P, E, c, s_) in inst: b(f"v_permlane16_swap_b32 v{c}, v{c+1}")
    b("s_nop 0")
    for (P, E, c, s_) in inst: b(f"v_max_f32 v{c}, v{c}, v{c+1}")
    for (P, E, c, s_) in inst: b(f"v_mov_b32 v{c+1}, v{c}")
    b("s_nop 0")
    for (P, E, c, s_) in inst: b(f"v_permlane16_swap_b32 v{c}, v{c+1}")
    b("s_nop 0")
    for (P, E, c, s_) in inst:
        b(f"v_pk_mul_f32 {v(c,2)}, {v(c,2)}, s[{sL}:{sL+1}] neg_lo:[1,0] neg_hi:[1,0]")
    for i in range(9):
        for (P, E, c, s_) in inst:
            pr = (P + i) & ~1; hi = (P + i) & 1
            b(f"v_pk_fma_f32 {v(E[i],2)}, {v(pr,2)}, s[{sL}:{sL+1}], {v(c,2)} op_sel:[{hi},0,0] op_sel_hi:[{hi},1,1] neg_hi:[1,0,0]")
    for i in range(9):
        for (P, E, c, s_) in inst:
            b(f"v_exp_f32 v{E[i]}, v{E[i]}")
            b(f"v_exp_f32 v{E[i]+1}, v{E[i]+1}")
    for (P, E, c, s_) in inst: b(f"v_pk_add_f32 {v(s_,2)}, {v(E[0],2)}, {v(E[1],2)}")
    for i in range(2, 9):
        for (P, E, c, s_) in inst: b(f"v_pk_add_f32 {v(s_,2)}, {v(s_,2)}, {v(E[i],2)}")
    b("s_nop 0")
    for (P, E, c, s_) in inst: b(f"v_permlane16_swap_b32 v{s_}, v{s_+1}")
    b("s_nop 0")
    for (P, E, c, s_) in inst: b(f"v_add_f32 v{s_}, v{s_}, v{s_+1}")
    for (P, E, c, s_) in inst: b(f"v_mov_b32 v{s_+1}, v{s_}")
    b("s_nop 0")
    for (P, E, c, s_) in inst: b(f"v_permlane16_swap_b32 v{s_}, v{s_+1}")
    b("s_nop 0")
    for (P, E, c, s_) in inst:
        b(f"v_rcp_f32 v{s_}, v{s_}")
        b(f"v_rcp_f32 v{s_+1}, v{s_+1}")
    b("s_nop 0")
    for i in range(9):
        for (P, E, c, s_) in inst: b(f"v_pk_mul_f32 {v(E[i],2)}, {v(E[i],2)}, {v(s_,2)}")
    for i in range(9):
        for (P, E, c, s_) in inst: b(f"v_cvt_pk_bf16_f32 v{P+i}, v{E[i]}, v{E[i]+1}")
    for (P, E, c, s_) in inst: b(f"v_mov_b32 v{P+9}, 0")
    b("s_setpc_b64 s[84:85]")
    b.label("L_at_end")

def attn_table():
    T = scatter_table()
    s = "L_at_table:\n"
    for i in range(0, len(T), 16):
        s += "  .short " + ", ".join(str(x) for x in T[i:i+16]) + "\n"
    return s
```

```python
from asmlib import *
from ffn_up import HB_STEPS, HB_R16, HB_SIZE, S_OFF, G1_OFF, P_OFF, FL_OFF, VM, f2u
P_UNIT = 4608
NSPLIT = 6
P_SIZE = NSPLIT*32*16*P_UNIT
DB_H1 = 0
DB_H2 = 48
DB_O = 96
DB_P = 104
DB_KV = 136

def wo_row_table():
    T = []
    for s in range(6):
        rows = []
        for rho in range(96):
            q, rl = rho >> 5, rho & 31
            om = 3*s + q
            if om < 16: rows.append(36*om + rl + (2 if rl >= 16 else 0))
            else:
                u2, g, r4 = rl >> 4, (rl >> 2) & 3, rl & 3
                P = 8*(om-16) + 2*g + u2
                rows.append(36*P + 18*(r4 >> 1) + 16 + (r4 & 1))
        T.append(rows)
    return T

def flag_addr(b, s_idx, base, vt0, sT):
    b(f"s_add_u32 s{sT}, s{s_idx}, {base}")
    b(f"s_lshl_b32 s{sT}, s{sT}, 7")
    b(f"s_add_u32 s{sT}, s{sT}, {FL_OFF}")
    b(f"v_mov_b32 v{vt0}, s{sT}")

def signal_byte(b, sWsp, s_idx, base, vt0, vt1, sT, sT2):
    flag_addr(b, s_idx, base, vt0, sT)
    b(f"v_mov_b32 v{vt1}, 1")
    b("s_mov_b64 s[80:81], exec")
    b("s_mov_b64 exec, 1")
    b(f"global_atomic_add v{vt0}, v{vt1}, s[{sWsp}:{sWsp+1}]")
    b("s_mov_b64 exec, s[80:81]")

def poll_byte(b, sWsp, s_idx, base, target, vt0, vt1, sT, sT2, tag, sw=None, sleep=4):
    if sw is not None:
        b(f"s_cmp_eq_u32 s{sw}, 0")
        b(f"s_cbranch_scc0 L_polld_{tag}")
    flag_addr(b, s_idx, base, vt0, sT)
    b.label(f"L_poll_{tag}")
    b(f"global_load_dword v{vt1}, v{vt0}, s[{sWsp}:{sWsp+1}] sc1")
    b("s_waitcnt vmcnt(0)")
    b(f"v_readfirstlane_b32 s{sT}, v{vt1}")
    b(f"s_cmp_ge_u32 s{sT}, {target}")
    b(f"s_cbranch_scc1 L_polld_{tag}")
    b(f"s_sleep {sleep}")
    b(f"s_branch L_poll_{tag}")
    b.label(f"L_polld_{tag}")


class DN: pass
def _regs():
    R = DN()
    R.sHB, R.sW, R.sWo, R.sPs = 8, 12, 16, 20
    R.sx, R.sj, R.smt, R.snt, R.sw, R.ssp = 24, 25, 26, 27, 28, 29
    R.sHs = 32; R.sT = 40; R.sT2 = 41; R.sM0 = 42
    R.sWs = 60; R.sSlW = 61; R.sSlR = 62; R.sSig = 63
    R.kN288 = 64; R.kR16 = 65; R.kSig2 = 66; R.kTile = 67; R.kCnt = 68
    R.sDbg = 58
    R.vOff = 2; R.vAn = 9; R.vHo = 11; R.vAw = 14; R.vAc = 15; R.vG1 = 20
    R.vA = 24; R.ACC = 64; R.vOffO = 216; R.vFl = 224
    R.t0, R.t1, R.t2, R.L, R.G = 208, 209, 210, 211, 212
    return R
SLOT = 28672; NSLOT = 5; NST = 9

def _helpers(R):
    def Bf(st, q, r): return a((st*12 + q*4 + r)*4, 4)
    def dma(k):
        return [f"s_add_u32 s{R.sT}, s{R.sSlW}, {k*4096}",
                f"s_add_u32 m0, s{R.sT}, s{R.sM0}",
                "s_nop 0",
                f"buffer_load_dwordx4 v{R.vOff+k}, s[{R.sW}:{R.sW+3}], s{R.sWs} offen lds"]
    def bload(st, q, r):
        return f"buffer_load_dwordx4 {Bf(st,q,r)}, v{R.vHo}, s[{R.sHB}:{R.sHB+3}], s{R.sHs+r} offen offset:{q*1024} sc1"
    def adv_slotW():
        return [f"s_add_u32 s{R.sSlW}, s{R.sSlW}, {SLOT}",
                f"s_cmp_eq_u32 s{R.sSlW}, {SLOT*NSLOT}",
                f"s_cselect_b32 s{R.sSlW}, 0, s{R.sSlW}"]
    return Bf, dma, bload, adv_slotW

def step_adv(b, idx_sgpr, at, inc_norm, inc_at, regs):
    pass

def gen_down_pre(b, opt):
    R = _regs(); Bf, dma, bload, adv_slotW = _helpers(R)
    sT, sT2, t0, t1, t2, L, G = R.sT, R.sT2, R.t0, R.t1, R.t2, R.L, R.G
    b("s_load_dwordx2 s[48:49], s[0:1], 56")
    b("s_load_dwordx2 s[50:51], s[0:1], 24")
    b("s_load_dwordx4 s[52:55], s[0:1], 80")
    b(f"s_and_b32 s{R.sx}, s2, 7")
    b(f"s_lshr_b32 s{R.sj}, s2, 3")
    b(f"s_mul_i32 s{sT}, s{R.sj}, 171")
    b(f"s_lshr_b32 s{sT}, s{sT}, 9")
    b(f"s_mul_i32 s{sT2}, s{sT}, 3")
    b(f"s_sub_u32 s{sT2}, s{R.sj}, s{sT2}")
    b(f"s_mul_i32 s44, s{R.sx}, 3")
    b(f"s_add_u32 s{sT2}, s{sT2}, s44")
    b(f"s_lshr_b32 s{sT2}, s{sT2}, 2")
    b(f"s_mul_i32 s{sT}, s{sT}, 6")
    b(f"s_add_u32 s{R.kSig2}, s{sT}, s{sT2}")
    b(f"s_mul_i32 s{sT}, s{R.sx}, 6")
    b(f"s_lshr_b32 s{sT2}, s{R.sj}, 2")
    b(f"s_add_u32 s{sT}, s{sT}, s{sT2}")
    b(f"s_lshr_b32 s{R.ssp}, s{sT}, 3")
    b(f"s_and_b32 s{R.smt}, s{sT}, 7")
    b(f"s_and_b32 s{R.snt}, s{R.sj}, 3")
    b(f"s_mul_i32 s{R.kCnt}, s{R.smt}, 6")
    b(f"s_add_u32 s{R.kCnt}, s{R.kCnt}, s{R.ssp}")
    b(f"v_and_b32 v{L}, 63, v0")
    b(f"v_lshrrev_b32 v{G}, 4, v{L}")
    b("s_waitcnt lgkmcnt(0)")
    b(f"s_mov_b32 s{R.sDbg}, s54"); b(f"s_mov_b32 s{R.sDbg+1}, s55")
    flag_addr(b, R.kCnt, DB_H1, t0, sT)
    b(f"global_load_dword v{R.vFl}, v{t0}, s[{R.sDbg}:{R.sDbg+1}] sc1")
    srd(b, R.sHB, 54, HB_SIZE)
    srd(b, R.sW, 48, 5308416)
    srd(b, R.sWo, 50, 663552)
    b(f"s_lshl_b32 s{sT}, s{R.sw}, 6")
    b("s_mov_b32 s44, 58255")
    for k in range(7):
        b(f"v_add_u32 v{t0}, s{sT}, v{L}")
        if k: b(f"v_add_u32 v{t0}, {256*k}, v{t0}")
        b(f"v_mul_u32_u24 v{t1}, s44, v{t0}")
        b(f"v_lshrrev_b32 v{t1}, 20, v{t1}")
        b(f"v_mul_u32_u24 v{t2}, 18, v{t1}")
        b(f"v_sub_u32 v{t2}, v{t0}, v{t2}")
        b(f"v_lshlrev_b32 v{R.vOffO+k}, 4, v{t2}")
        b(f"v_mul_u32_u24 v{R.vOff+k}, 1152, v{t1}")
        b(f"v_add_u32 v{R.vOff+k}, v{R.vOff+k}, v{R.vOffO+k}")
        b(f"v_min_u32 v{32+k}, 95, v{t1}")
    b(f"s_mul_i32 s{R.sWs}, s{R.ssp}, {768*1152}")
    b(f"s_mul_i32 s{R.kN288}, s{R.snt}, 288")
    b(f"s_add_u32 s{R.sWs}, s{R.sWs}, s{R.kN288}")
    b(f"s_lshl_b32 s{R.sM0}, s{R.sw}, 10")
    b(f"s_mov_b32 s{R.sSlW}, 0")
    for n in range(3):
        for k in range(7): b.ext(dma(k))
        b.ext(adv_slotW())
        b(f"s_add_u32 s{R.sWs}, s{R.sWs}, {192*1152}")
    b(f"s_lshl_b32 s{sT}, s{R.smt}, 2")
    b(f"s_add_u32 s{sT}, s{sT}, s{R.sw}")
    b(f"s_mul_i32 s{R.kR16}, s{sT}, {4*HB_R16}")
    b(f"s_mul_i32 s{sT2}, s{R.ssp}, {24*1024}")
    b(f"s_add_u32 s{R.sHs}, s{R.kR16}, s{sT2}")
    for r in range(1, 4): b(f"s_add_u32 s{R.sHs+r}, s{R.sHs}, {r*HB_R16}")
    b("s_waitcnt vmcnt(21)")
    b(f"v_readfirstlane_b32 s{sT}, v{R.vFl}")
    b(f"s_cmp_ge_u32 s{sT}, 4")
    b("s_cbranch_scc1 L_dn_h1ok")
    poll_byte(b, R.sDbg, R.kCnt, DB_H1, 4, t0, t1, sT, sT2, "h1", sleep=4)
    b.label("L_dn_h1ok")
    for n in range(2):
        for q in range(3):
            for r in range(4): b(bload(n, q, r))
        for r in range(4): b(f"s_add_u32 s{R.sHs+r}, s{R.sHs+r}, 6144")
    b("s_getpc_b64 s[56:57]")
    b.label("L_dn_pc")
    b("s_add_u32 s56, s56, L_dn_table-L_dn_pc")
    b("s_addc_u32 s57, s57, 0")
    b(f"s_mul_i32 s{sT2}, s{R.ssp}, 384")
    for k in range(7):
        b(f"v_lshlrev_b32 v{t1}, 2, v{32+k}")
        b(f"v_add_u32 v{t1}, s{sT2}, v{t1}")
        b(f"global_load_dword v{40+k}, v{t1}, s[56:57]")

def gen_down(b, opt):
    R = _regs(); Bf, dma, bload, adv_slotW = _helpers(R)
    sT, sT2, t0, t1, t2, L, G = R.sT, R.sT2, R.t0, R.t1, R.t2, R.L, R.G
    vA, ACC, sSig, sw, sDbg = R.vA, R.ACC, R.sSig, R.sw, R.sDbg
    def acc(t, r): return ACC + (t*4 + r)*4
    def stamp(lane):
        if opt.get("stamps"):
            b("s_memtime s[92:93]"); b("s_waitcnt lgkmcnt(0)"); b(f"v_writelane_b32 v254, s92, {lane}")
    b(f"v_bfe_u32 v{t0}, v{L}, 2, 2")
    b(f"v_lshl_add_u32 v{t0}, v{G}, 2, v{t0}")
    b(f"v_mul_u32_u24 v{R.vAw}, 288, v{t0}")
    b(f"v_and_b32 v{t1}, 3, v{L}")
    b(f"v_lshl_add_u32 v{R.vAw}, v{t1}, 3, v{R.vAw}")
    b(f"s_add_u32 s{R.sPs}, s54, {P_OFF}")
    b(f"s_addc_u32 s{R.sPs+1}, s55, 0")
    b(f"s_and_b32 s{R.sPs+1}, s{R.sPs+1}, 0xffff")
    b(f"s_mov_b32 s{R.sPs+2}, {P_SIZE}")
    b(f"s_mov_b32 s{R.sPs+3}, 0x00020000")
    for i in range(144): b(f"v_mov_b32 v{ACC+i}, 0")
    b("s_waitcnt vmcnt(0)")
    for k in range(7):
        b(f"v_mul_u32_u24 v{t0}, 1152, v{40+k}")
        b(f"v_add_u32 v{R.vOffO+k}, v{R.vOffO+k}, v{t0}")
    b("s_barrier")
    b(f"s_cmp_eq_u32 s{sw}, 0")
    b("s_cbranch_scc0 L_dn_nosig")
    signal_byte(b, sDbg, R.kSig2, DB_H2, t0, t1, sT, sT2)
    b.label("L_dn_nosig")
    stamp(1)
    b(f"s_mov_b32 s{sSig}, 0")
    b(f"s_mov_b32 s{R.sSlR}, 0")
    b(f"v_mov_b32 v{R.vAc}, v{R.vAw}")
    def rd(t, q, addr):
        d = vA + t*4
        return [f"ds_read_b64_tr_b16 {v(d,2)}, v{addr} offset:{q*9216 + t*32}",
                f"ds_read_b64_tr_b16 {v(d+2,2)}, v{addr} offset:{q*9216 + 4608 + t*32}"]
    D = 4
    for t in range(D): b.ext(rd(t, 0, R.vAc))
    stamp(3)

    def stage(st):
        out = []
        out.append(f"s_add_u32 s{R.sSlR}, s{R.sSlR}, {SLOT}")
        out.append(f"s_cmp_eq_u32 s{R.sSlR}, {SLOT*NSLOT}")
        out.append(f"s_cselect_b32 s{R.sSlR}, 0, s{R.sSlR}")
        out.append(f"v_add_u32 v{R.vAn}, s{R.sSlR}, v{R.vAw}")
        out.append("s_waitcnt vmcnt(19)")
        vmq = [bload((st+2) % 3, q, r) for q in range(3) for r in range(4)]
        dq = [dma(k) for k in range(7)]
        nb_issued = 0; nd_issued = 0
        for tau in range(27):
            q, t = tau // 9, tau % 9
            if tau == 18:
                out.append(f"s_waitcnt vmcnt({19 + nb_issued + nd_issued})")
                out.append("s_barrier")
            out.append(f"s_waitcnt lgkmcnt({2*(D-1)})")
            nt_ = tau + D
            rds = rd(nt_ % 9, nt_ // 9, R.vAc) if nt_ < 27 else rd(nt_ - 27, 0, R.vAn)
            fill = list(rds)
            if tau < 12:
                fill.append(vmq[tau]); nb_issued += 1
            if 12 <= tau < 19:
                fill += dq[tau-12]; nd_issued += 1
            for r in range(4):
                out.append(f"v_mfma_f32_16x16x32_bf16 {v(acc(t,r),4)}, {v(vA+t*4,4)}, {Bf(st,q,r)}, {v(acc(t,r),4)}")
                n = (len(fill) + (3-r)) // (4-r)
                for _ in range(n):
                    if fill: out.append(fill.pop(0))
            assert not fill
        out.append(f"v_mov_b32 v{R.vAc}, v{R.vAn}")
        out += adv_slotW()
        out.append(f"s_add_u32 s{sSig}, s{sSig}, 1")
        return out
    def check_flag(idx_sgpr, base_dw, target, tag):
        b("s_waitcnt vmcnt(19)")
        b(f"v_readfirstlane_b32 s{sT}, v{R.vFl}")
        b(f"s_cmp_ge_u32 s{sT}, {target}")
        b(f"s_cbranch_scc1 L_dn_ok_{tag}")
        poll_byte(b, sDbg, idx_sgpr, base_dw, target, t0, t1, sT, sT2, tag, sleep=4)
        b.label(f"L_dn_ok_{tag}")
    def issue_flag(idx_sgpr, base_dw):
        flag_addr(b, idx_sgpr, base_dw, t0, sT)
        b(f"global_load_dword v{R.vFl}, v{t0}, s[{sDbg}:{sDbg+1}] sc1")
    def post(idx):
        b(f"s_mov_b32 s{sT}, {6*32*1152}")
        b(f"s_cmp_eq_u32 s{sSig}, 1")
        b(f"s_cselect_b32 s{sT}, {(-15*32*1152) & 0xffffffff}, s{sT}")
        b(f"s_add_u32 s{R.sWs}, s{R.sWs}, s{sT}")
        b(f"s_cmp_eq_u32 s{sSig}, {NST-1-3}")
        b(f"s_cbranch_scc0 L_dn_nsw{idx}")
        for i in range(4): b(f"s_mov_b32 s{R.sW+i}, s{R.sWo+i}")
        b(f"s_mov_b32 s{R.sWs}, s{R.kN288}")
        for k in range(7): b(f"v_mov_b32 v{R.vOff+k}, v{R.vOffO+k}")
        b.label(f"L_dn_nsw{idx}")
        b(f"s_cmp_gt_u32 s{sSig}, {NST-1-3}")
        b(f"s_cselect_b32 s{R.sW+2}, 0, s{R.sW+2}")
        b(f"s_mov_b32 s{sT}, {6*1024}")
        b(f"s_cmp_eq_u32 s{sSig}, 2")
        b(f"s_cselect_b32 s{sT}, {(-15*1024) & 0xffffffff}, s{sT}")
        for r in range(4): b(f"s_add_u32 s{R.sHs+r}, s{R.sHs+r}, s{sT}")
        if idx == 0:
            b(f"s_cmp_eq_u32 s{sSig}, 1")
            b(f"s_cbranch_scc0 L_dn_nf1")
            issue_flag(R.kCnt, DB_H2)
            b.label("L_dn_nf1")
        if idx == 1:
            b(f"s_cmp_eq_u32 s{sSig}, 2")
            b(f"s_cbranch_scc0 L_dn_nc1")
            check_flag(R.kCnt, DB_H2, 4, "h2")
            b.label("L_dn_nc1")
        if idx == 1:
            b(f"s_cmp_eq_u32 s{sSig}, 5")
            b(f"s_cbranch_scc0 L_dn_nf2")
            issue_flag(R.smt, DB_O)
            b.label("L_dn_nf2")
        if idx == 2:
            b(f"s_cmp_eq_u32 s{sSig}, {NST-1-2}")
            b(f"s_cbranch_scc0 L_dn_nsb{idx}")
            check_flag(R.smt, DB_O, 8, "o")
            b(f"s_mul_i32 s{sT}, s{R.ssp}, 3")
            b(f"s_add_u32 s{sT}, s{sT}, 144")
            b(f"s_lshl_b32 s{sT}, s{sT}, 10")
            b(f"s_add_u32 s{R.sHs}, s{R.kR16}, s{sT}")
            for r in range(1, 4): b(f"s_add_u32 s{R.sHs+r}, s{R.sHs}, {r*HB_R16}")
            b(f"s_lshl_b32 s{sT}, s{R.smt}, 2")
            b(f"s_add_u32 s{sT}, s{sT}, s{sw}")
            b(f"s_lshl_b32 s{sT}, s{sT}, 8")
            b(f"v_and_b32 v{t0}, 15, v{L}")
            b(f"v_lshlrev_b32 v{t0}, 2, v{t0}")
            b(f"v_add_u32 v{t0}, s{sT}, v{t0}")
            b(f"v_add_u32 v{t0}, {G1_OFF}, v{t0}")
            for r in range(4):
                b(f"global_load_dword v{R.vG1+r}, v{t0}, s[54:55] offset:{64*r} sc1")
            b.label(f"L_dn_nsb{idx}")
        b(f"s_cmp_gt_u32 s{sSig}, {NST-1-2}")
        b(f"s_cselect_b32 s{R.sHB+2}, 0, s{R.sHB+2}")

    b(".p2align 6")
    b.label("L_dn_loop")
    b.ext(stage(0)); post(0)
    b.ext(stage(1)); post(1)
    b(f"s_cmp_eq_u32 s{sSig}, {NST-1}")
    b("s_cbranch_scc1 L_dn_last")
    b.ext(stage(2)); post(2)
    b("s_branch L_dn_loop")
    b.label("L_dn_last")
    stamp(2)
    b("s_waitcnt vmcnt(0)")
    b(f"s_lshl_b32 s{R.kTile}, s{R.smt}, 2")
    b(f"s_add_u32 s{R.kTile}, s{R.kTile}, s{R.snt}")
    b(f"s_lshl_b32 s{sT}, s{R.ssp}, 5")
    b(f"s_add_u32 s{sT}, s{sT}, s{R.kTile}")
    b(f"s_lshl_b32 s{sT}, s{sT}, 2")
    b(f"s_add_u32 s{sT}, s{sT}, s{sw}")
    b(f"s_mul_i32 s69, s{sT}, {4*P_UNIT}")
    for r in range(1, 4): b(f"s_add_u32 s{69+r}, s69, {r*P_UNIT}")
    b(f"v_lshrrev_b32 v{t2}, 1, v{R.vHo}")
    seq = [(t, q) for t in range(9) for q in range(3)]
    def rdl(i):
        t, q = seq[i]; d = vA + (i % 9)*4
        return [f"ds_read_b64_tr_b16 {v(d,2)}, v{R.vAc} offset:{q*9216 + t*32}",
                f"ds_read_b64_tr_b16 {v(d+2,2)}, v{R.vAc} offset:{q*9216 + 4608 + t*32}"]
    b("s_waitcnt lgkmcnt(0)")
    DL = 5
    for i in range(DL): b.ext(rdl(i))
    pend = []
    PK = [225, 229, 233, 237, 241, 245]
    PK = [226, 230, 234, 238, 242, 246]
    pkc = 0
    for i, (t, q) in enumerate(seq):
        if q == 0:
            for r in range(4):
                b(f"v_pk_mul_f32 {v(acc(t,r),2)}, {v(acc(t,r),2)}, {v(R.vG1+(r&2),2)} op_sel:[0,{r&1}] op_sel_hi:[1,{r&1}]")
                b(f"v_pk_mul_f32 {v(acc(t,r)+2,2)}, {v(acc(t,r)+2,2)}, {v(R.vG1+(r&2),2)} op_sel:[0,{r&1}] op_sel_hi:[1,{r&1}]")
        nxt = min(DL - 1, 26 - i)
        b(f"s_waitcnt lgkmcnt({2*nxt})")
        fill = rdl(i + DL) if i + DL < 27 else []
        fill = fill + pend[:6]; pend = pend[6:]
        if q == 0: b("s_nop 0")
        for r in range(4):
            b(f"v_mfma_f32_16x16x32_bf16 {v(acc(t,r),4)}, {v(vA+(i%9)*4,4)}, {Bf(2,q,r)}, {v(acc(t,r),4)}")
            n = (len(fill) + (3-r)) // (4-r)
            for _ in range(n):
                if fill: b(fill.pop(0))
        if q == 2 and (t % 2 == 1 or t == 8):
            todo = ["s_nop 3"]
            for r in range(4):
                Pk = PK[pkc % 6]; pkc += 1
                if t < 8:
                    for h in range(2):
                        A_ = acc(t - 1 + h, r)
                        todo.append(f"v_cvt_pk_bf16_f32 v{Pk+2*h}, v{A_}, v{A_+1}")
                        todo.append(f"v_cvt_pk_bf16_f32 v{Pk+2*h+1}, v{A_+2}, v{A_+3}")
                    todo.append(f"buffer_store_dwordx4 {v(Pk,4)}, v{R.vHo}, s[{R.sPs}:{R.sPs+3}], s{69+r} offen offset:{(t//2)*1024} sc1 nt")
                else:
                    A_ = acc(8, r)
                    todo.append(f"v_cvt_pk_bf16_f32 v{Pk}, v{A_}, v{A_+1}")
                    todo.append(f"v_cvt_pk_bf16_f32 v{Pk+1}, v{A_+2}, v{A_+3}")
                    todo.append(f"s_add_u32 s{sT2}, s{69+r}, 4096")
                    todo.append(f"buffer_store_dwordx2 {v(Pk,2)}, v{t2}, s[{R.sPs}:{R.sPs+3}], s{sT2} offen sc1 nt")
            pend = pend + ["s_nop 0"]*0 + [("D", todo)] if False else pend + todo
    b("s_nop 7")
    for x in pend: b(x)
    stamp(4)
    b("s_waitcnt vmcnt(0)")
    b("s_barrier")
    b(f"s_cmp_eq_u32 s{sw}, 0")
    b("s_cbranch_scc0 L_dn_nosig2")
    signal_byte(b, sDbg, R.kTile, DB_P, t0, t1, sT, sT2)
    b.label("L_dn_nosig2")
    stamp(5)
    b(f"s_mov_b32 s30, s{R.kTile}")
    b(f"s_mov_b32 s31, s{R.ssp}")

def down_table():
    T = wo_row_table()
    s = "L_dn_table:\n"
    for rows in T:
        s += "  .long " + ", ".join(str(r) for r in rows) + "\n"
    return s

def gen_reduce(b, opt):
    sP, sO, sDbg = 8, 12, 58
    b("s_load_dwordx4 s[52:55], s[0:1], 80")
    b("s_load_dwordx2 s[50:51], s[0:1], 72")
    b("v_lshrrev_b32 v2, 6, v0")
    b("v_and_b32 v3, 63, v0")
    b("v_readfirstlane_b32 s28, v2")
    b("s_waitcnt lgkmcnt(0)")
    b(f"s_mov_b32 s{sDbg}, s54"); b(f"s_mov_b32 s{sDbg+1}, s55")
    b("s_and_b32 s21, s28, 1")
    b("s_lshr_b32 s22, s28, 1")
    b("s_lshl_b32 s20, s31, 1")
    b("s_add_u32 s22, s22, s20")
    b("s_lshl_b32 s20, s30, 4")
    b("s_add_u32 s22, s22, s20")
    b(f"s_add_u32 s{sP}, s54, {P_OFF}")
    b(f"s_addc_u32 s{sP+1}, s55, 0")
    b(f"s_and_b32 s{sP+1}, s{sP+1}, 0xffff")
    b(f"s_mov_b32 s{sP+2}, {P_SIZE}")
    b(f"s_mov_b32 s{sP+3}, 0x00020000")
    srd(b, sO, 50, 2359296)
    b(f"s_mul_i32 s23, s22, {P_UNIT}")
    b("s_lshl_b32 s24, s21, 11")
    b("s_add_u32 s23, s23, s24")
    b("v_lshlrev_b32 v4, 4, v3")
    b("v_lshlrev_b32 v5, 3, v3")
    b("s_add_u32 s25, s23, 2048")
    def stamp(lane):
        if opt.get("stamps"):
            b("s_memtime s[92:93]"); b("s_waitcnt lgkmcnt(0)"); b(f"v_writelane_b32 v255, s92, {lane}")
    poll_byte(b, sDbg, 30, DB_P, NSPLIT, 6, 7, 40, 41, "p", sw=28, sleep=opt.get("psleep", 4))
    b("s_barrier")
    stamp(13)
    for x in range(NSPLIT):
        base = 16 + 10*x
        b(f"s_add_u32 s26, s23, {x*32*16*P_UNIT}")
        b(f"buffer_load_dwordx4 {v(base,4)}, v4, s[{sP}:{sP+3}], s26 offen sc1")
        b(f"buffer_load_dwordx4 {v(base+4,4)}, v4, s[{sP}:{sP+3}], s26 offen offset:1024 sc1")
        b(f"s_add_u32 s27, s25, {x*32*16*P_UNIT}")
        b(f"buffer_load_dwordx2 {v(base+8,2)}, v5, s[{sP}:{sP+3}], s27 offen sc1")
    b("s_lshr_b32 s29, s22, 4")
    b("s_lshr_b32 s34, s29, 2")
    b("s_and_b32 s35, s29, 3")
    b("s_and_b32 s32, s22, 15")
    b("s_lshl_b32 s33, s34, 4")
    b("s_add_u32 s33, s33, s32")
    b(f"s_mul_i32 s33, s33, {16*1152}")
    b("s_mul_i32 s34, s35, 288")
    b("s_add_u32 s33, s33, s34")
    b("s_lshl_b32 s34, s21, 7")
    b("s_add_u32 s33, s33, s34")
    b("v_and_b32 v6, 15, v3")
    b("v_mul_u32_u24 v6, 1152, v6")
    b("v_lshrrev_b32 v7, 4, v3")
    b("v_lshl_add_u32 v6, v7, 3, v6")
    ACC = 100
    b("s_mov_b32 s35, 0xffff0000")
    for x in range(NSPLIT):
        base = 16 + 10*x
        b(f"s_waitcnt vmcnt({3*(NSPLIT-1-x)})")
        for d in range(10):
            if x == 0:
                b(f"v_lshlrev_b32 v{ACC+2*d}, 16, v{base+d}")
                b(f"v_and_b32 v{ACC+2*d+1}, s35, v{base+d}")
            else:
                b(f"v_lshlrev_b32 v8, 16, v{base+d}")
                b(f"v_and_b32 v9, s35, v{base+d}")
                b(f"v_pk_add_f32 {v(ACC+2*d,2)}, {v(ACC+2*d,2)}, v[8:9]")
    stamp(14)
    for d in range(10):
        b(f"v_cvt_pk_bf16_f32 v{16+d}, v{ACC+2*d}, v{ACC+2*d+1}")
    for tl in range(4):
        b(f"buffer_store_dwordx2 {v(16+2*tl,2)}, v6, s[{sO}:{sO+3}], s33 offen offset:{tl*32}")
    b("s_cmp_eq_u32 s21, 1")
    b("s_cbranch_scc0 L_rd_done")
    b(f"buffer_store_dwordx2 {v(24,2)}, v6, s[{sO}:{sO+3}], s33 offen offset:128")
    b.label("L_rd_done")
```

```python
from asmlib import *
import struct
def f2u(x): return struct.unpack("<I", struct.pack("<f", x))[0]

HB_STEPS = 162
HB_R16 = HB_STEPS*1024
HB_SIZE = 128*HB_R16
S_OFF   = 0x1440000
FL_OFF  = 0x1470000
FL_SIZE = 64*320
G1_OFF  = 0x1478000
P_OFF   = 0x1480000

GK0 = -2.0*0.7978845608028654*1.4426950408889634
GK1 = GK0*0.044715

class VM:
    def __init__(self): self.n = 0
    def issue(self): self.n += 1; return self.n - 1
    def wait_for(self, idx): return min(63, self.n - 1 - idx)

def gen_ffn_up(b, opt):
    BUF = 73728
    SPARE = 147456
    sX, sG, sU, sH = 8, 12, 16, 20
    sx, sj, smt, snt, sw = 24, 25, 26, 27, 28
    sXr = 32
    sHr = 36
    sWb = 40
    sM0 = 41
    sT = 42
    sCnt = 43
    sM0s = 44
    vXd = 14
    vWo, vHo, vK0 = 10, 11, 12
    vA = 2
    vT = 16
    vP = 24
    vF = 32
    accE, accO = 64, 128
    vXov = 192
    vXl = 224
    def X(r, bb):
        ph = bb*4 + r
        return a(4*ph, 4) if ph < 64 else v(vXov + 4*(ph-64), 4)
    def acc(base, f, r): return base + (f*4 + r)*4
    def stamp(lane):
        if opt.get("stamps"):
            b("s_memtime s[92:93]"); b("s_waitcnt lgkmcnt(0)"); b(f"v_writelane_b32 v254, s92, {lane+16}")

    b("s_load_dwordx2 s[48:49], s[0:1], 0")
    b("s_load_dwordx2 s[50:51], s[0:1], 40")
    b("s_load_dwordx2 s[52:53], s[0:1], 48")
    b("s_load_dwordx2 s[54:55], s[0:1], 88")
    b("s_load_dwordx2 s[70:71], s[0:1], 80")
    b(f"s_and_b32 s{sx}, s2, 7")
    b(f"s_lshr_b32 s{sj}, s2, 3")
    b(f"s_mul_i32 s{smt}, s{sj}, 171")
    b(f"s_lshr_b32 s{smt}, s{smt}, 9")
    b(f"s_mul_i32 s{sT}, s{smt}, 3")
    b(f"s_sub_u32 s{snt}, s{sj}, s{sT}")
    b(f"s_mul_i32 s{sT}, s{sx}, 3")
    b(f"s_add_u32 s{snt}, s{snt}, s{sT}")
    L, G, M = 228, 229, 230
    t0, t1, t2 = 231, 232, 233
    b(f"v_lshrrev_b32 v{t0}, 6, v0")
    b(f"v_and_b32 v{L}, 63, v0")
    b(f"v_readfirstlane_b32 s{sw}, v{t0}")
    b(f"v_lshrrev_b32 v{G}, 4, v{L}")
    b(f"v_and_b32 v{M}, 15, v{L}")
    b(f"v_lshrrev_b32 v{t0}, 2, v{L}")
    b(f"v_mul_u32_u24 v{vWo}, 9216, v{t0}")
    b(f"v_lshrrev_b32 v{t0}, 1, v{L}")
    b(f"v_lshrrev_b32 v{t1}, 5, v{L}")
    b(f"v_xor_b32 v{t0}, v{t0}, v{t1}")
    b(f"v_and_b32 v{t0}, 1, v{t0}")
    b(f"v_lshl_add_u32 v{vWo}, v{t0}, 5, v{vWo}")
    b(f"v_and_b32 v{t0}, 1, v{L}")
    b(f"v_lshl_add_u32 v{vWo}, v{t0}, 4, v{vWo}")
    for o in range(2):
        b(f"v_lshrrev_b32 v{t0}, 3, v{L}")
        b(f"v_add_u32 v{t0}, {8*o}, v{t0}")
        b(f"v_mul_u32_u24 v{vXd+o}, 1152, v{t0}")
        b(f"v_and_b32 v{t0}, 7, v{L}")
        b(f"v_add_u32 v{t1}, {4*o}, v{G}")
        b(f"v_xor_b32 v{t0}, v{t0}, v{t1}")
        b(f"v_lshl_add_u32 v{vXd+o}, v{t0}, 4, v{vXd+o}")
    b(f"v_lshlrev_b32 v{vHo}, 4, v{L}")
    b(f"v_bfe_u32 v{t0}, v{L}, 2, 2")
    b(f"v_lshl_add_u32 v{t0}, v{G}, 3, v{t0}")
    b(f"v_lshlrev_b32 v{t0}, 6, v{t0}")
    b(f"v_and_b32 v{t1}, 3, v{L}")
    b(f"v_lshl_add_u32 v{t0}, v{t1}, 3, v{t0}")
    b(f"v_and_b32 v{t1}, 1, v{G}")
    b(f"v_lshl_add_u32 v16, v{t1}, 5, v{t0}")
    b(f"v_xor_b32 v{t1}, 1, v{t1}")
    b(f"v_lshl_add_u32 v17, v{t1}, 5, v{t0}")
    for be in range(2):
        for mu in range(2):
            for t in range(2):
                off = be*BUF + mu*36864
                b(f"v_add_u32 v{vA + be*4 + mu*2 + t}, {off}, v{16+t}")
    b(f"v_mov_b32 v{vK0}, 0x{f2u(GK0):08x}")
    for q in range(2):
        b(f"v_lshrrev_b32 v{t0}, 1, v{M}")
        b(f"v_add_u32 v{t1}, {4*q}, v{G}")
        b(f"v_xor_b32 v{t0}, v{t0}, v{t1}")
        b(f"v_lshlrev_b32 v{t0}, 4, v{t0}")
        b(f"v_lshl_add_u32 v{vXl+q}, v{M}, 7, v{t0}")
    b(f"s_mul_i32 s{sM0}, s{sw}, 9216")
    b(f"s_lshl_b32 s{sM0s}, s{sw}, 12")
    b(f"s_add_u32 s{sM0s}, s{sM0s}, {SPARE}")
    b(f"s_add_u32 s{sT}, s{sM0}, {BUF}")
    for q in range(2):
        b(f"v_add_u32 v{vXl+2+q}, s{sM0s}, v{vXl+q}")
        b(f"v_add_u32 v{vXl+q}, s{sT}, v{vXl+q}")
    b("s_waitcnt lgkmcnt(0)")
    srd(b, sX, 48, 2359296)
    srd(b, sG, 50, 5308416)
    srd(b, sU, 52, 5308416)
    srd(b, sH, 54, HB_SIZE)
    b(f"s_lshr_b32 s72, s{snt}, 2")
    b(f"s_mul_i32 s{sT}, s{smt}, 6")
    b(f"s_add_u32 s72, s72, s{sT}")
    b(f"s_lshl_b32 s{sT}, s{smt}, 2")
    b(f"s_add_u32 s{sT}, s{sT}, s{sw}")
    b(f"s_mul_i32 s{sXr}, s{sT}, {64*1152}")
    for r in range(1, 4):
        b(f"s_add_u32 s{sXr+r}, s{sXr}, {r*16*1152}")
    b(f"s_mul_i32 s{sHr}, s{sT}, {4*HB_R16}")
    b(f"s_mul_i32 s{sT}, s{snt}, {6*1024}")
    b(f"s_add_u32 s{sHr}, s{sHr}, s{sT}")
    for r in range(1, 4):
        b(f"s_add_u32 s{sHr+r}, s{sHr}, {r*HB_R16}")
    b(f"s_mul_i32 s{sWb}, s{sw}, {9*16*9216}")
    b(f"s_mul_i32 s{sT}, s{snt}, 384")
    b(f"s_add_u32 s{sWb}, s{sWb}, s{sT}")

    def dma_group(k, beta):
        return [f"s_add_u32 m0, s{sM0}, {beta*BUF + k*1024}",
                f"s_add_u32 s{sT}, s{sWb}, {k*16*9216}",
                f"buffer_load_dwordx4 v{vWo}, s[{sG}:{sG+3}], s{sT} offen lds",
                f"s_add_u32 m0, s{sM0}, {beta*BUF + 36864 + k*1024}",
                "s_nop 0",
                f"buffer_load_dwordx4 v{vWo}, s[{sU}:{sU+3}], s{sT} offen lds"]
    NSL = 10
    def slot_m0(sl, o):
        if sl < 4: return f"s_add_u32 m0, s{sM0}, {BUF + sl*2048 + o*1024}"
        if sl < 8: return f"s_add_u32 m0, s{sM0}, {BUF + 36864 + (sl-4)*2048 + o*1024}"
        return f"s_add_u32 m0, s{sM0s}, {(sl-8)*2048 + o*1024}"
    def xdma(jx):
        kap, r = jx >> 2, jx & 3
        sl = jx % NSL
        return [slot_m0(sl, 0),
                f"s_add_u32 s{sT}, s{sXr+r}, {kap*128}",
                f"buffer_load_dwordx4 v{vXd}, s[{sX}:{sX+3}], s{sT} offen lds",
                slot_m0(sl, 1),
                "s_nop 0",
                f"buffer_load_dwordx4 v{vXd+1}, s[{sX}:{sX+3}], s{sT} offen lds"]
    def xread(jx):
        kap, r = jx >> 2, jx & 3
        sl = jx % NSL
        out = []
        for q in range(2):
            if sl < 4: ad, off = vXl+q, sl*2048
            elif sl < 8: ad, off = vXl+q, 36864 + (sl-4)*2048
            else: ad, off = vXl+2+q, (sl-8)*2048
            out.append(f"ds_read_b128 {X(r, 2*kap+q)}, v{ad} offset:{off}")
        return out

    def rd(beta, f, bb, ring):
        mu, t = f >> 1, f & 1
        ad = vA + beta*4 + mu*2 + t
        d = vF + ring*16 + f*4
        return [f"ds_read_b64_tr_b16 {v(d,2)}, v{ad} offset:{bb*2048}",
                f"ds_read_b64_tr_b16 {v(d+2,2)}, v{ad} offset:{bb*2048+256}"]
    def mfma(base, bb, slot):
        f, r = slot >> 2, slot & 3
        D = acc(base, f, r); A = vF + (bb & 1)*16 + f*4
        C = "0" if bb == 0 else v(D, 4)
        return f"v_mfma_f32_16x16x32_bf16 {v(D,4)}, {v(A,4)}, {X(r,bb)}, {C}"

    vm = VM()
    stamp(9)
    if opt.get("pfx", 0):
        b(f"s_mul_i32 s75, s{smt}, 3")
        b(f"s_sub_u32 s75, s{sj}, s75")
        b(f"s_mul_i32 s75, s75, 73728")
        b(f"s_mul_i32 s76, s{smt}, 294912")
        b(f"s_add_u32 s75, s75, s76")
        b(f"s_mul_i32 s76, s{sw}, 18432")
        b(f"s_add_u32 s75, s75, s76")
        b(f"v_lshlrev_b32 v236, 7, v{L}")
        b(f"buffer_load_dword v237, v236, s[{sX}:{sX+3}], s75 offen"); vm.issue()
        b(f"s_add_u32 s75, s75, 8192")
        b(f"buffer_load_dword v238, v236, s[{sX}:{sX+3}], s75 offen"); vm.issue()
        b(f"s_add_u32 s75, s75, 8192")
        b(f"v_mov_b32 v239, 0x7f000000")
        b(f"v_cmp_gt_u32 vcc, 16, v{L}")
        b("s_nop 1")
        b(f"v_cndmask_b32 v236, v239, v236, vcc")
        b(f"buffer_load_dword v240, v236, s[{sX}:{sX+3}], s75 offen"); vm.issue()
    w0_last = None
    for k in range(9):
        b.ext(dma_group(k, 0)); vm.issue(); w0_last = vm.issue()
    b(f"s_add_u32 s{sWb}, s{sWb}, 64")
    xid = {}
    def issue_x(jx, out):
        out += xdma(jx); vm.issue(); xid[jx] = vm.issue()
    tmp = []
    for jx in range(NSL): issue_x(jx, tmp)
    b.ext(tmp)
    stamp(10)
    b(f"s_waitcnt vmcnt({vm.wait_for(w0_last)})")
    b("s_barrier")
    stamp(11)
    for f in range(4): b.ext(rd(0, f, 0, 0))
    b(f"s_waitcnt vmcnt({vm.wait_for(xid[3])})")
    for jx in range(4): b.ext(xread(jx))
    stamp(12)
    last_read_step = {}
    for jx in range(36):
        kap, r = jx >> 2, jx & 3
        st = 2*kap - 2 + (r >> 1)
        last_read_step[jx % NSL] = st
    w1_pending = list(range(9))
    prev_read = [0, 1, 2, 3]
    w1_last = None
    for bb in range(18):
        pre = []
        reads_x = []
        kap1 = (bb >> 1) + 1
        xr = []
        if kap1 <= 8:
            xr = [4*kap1 + 2*(bb & 1), 4*kap1 + 2*(bb & 1) + 1]
        if bb == 17:
            b(f"s_waitcnt vmcnt({vm.wait_for(w1_last)}) lgkmcnt(0)")
            b("s_barrier")
        elif xr:
            b(f"s_waitcnt vmcnt({vm.wait_for(xid[xr[-1]])}) lgkmcnt(0)")
        else:
            b("s_waitcnt lgkmcnt(0)")
        fill = []
        nb, nbeta = (bb+1, 0) if bb < 17 else (0, 1)
        for f in range(4): fill += rd(nbeta, f, nb, 1 - (bb & 1))
        for jx in xr: fill += xread(jx)
        dm = []
        for jx in prev_read:
            if jx + NSL < 36: issue_x(jx + NSL, dm)
        while w1_pending:
            k = w1_pending[0]
            if k < 8:
                ok = last_read_step[k >> 1] < bb and last_read_step[4 + (k >> 1)] < bb
            else: ok = True
            if ok and len(xid) == 36:
                dm += dma_group(k, 1); vm.issue(); w1_last = vm.issue(); w1_pending.pop(0)
            else: break
        fill += dm
        prev_read = xr
        main = [mfma(accE, bb, s_) for s_ in range(16)]
        per = (len(fill) + 15)//16
        k = 0
        for m in main:
            b(m)
            for _ in range(per):
                if k < len(fill): b(fill[k]); k += 1
        assert k == len(fill)
    assert not w1_pending
    if opt.get("pf", 1):
        b(f"s_and_b32 s{sT}, s{sw}, 1")
        b(f"s_mul_i32 s{sT}, s{sT}, 36")
        b(f"s_mul_i32 s75, s{smt}, 72")
        b(f"s_add_u32 s{sT}, s{sT}, s75")
        b(f"s_mul_i32 s{sT}, s{sT}, 9216")
        b(f"s_mul_i32 s75, s{snt}, 384")
        b(f"s_add_u32 s75, s75, s{sT}")
        b(f"s_add_u32 s75, s75, 128")
        b(f"s_lshr_b32 s76, s{sw}, 1")
        b(f"s_cmp_eq_u32 s76, 0")
        for i in range(4): b(f"s_cselect_b32 s{76+i}, s{sG+i}, s{sU+i}")
        b("v_and_b32 v236, 63, v0")
        b("v_lshrrev_b32 v237, 1, v236")
        b("v_mul_u32_u24 v237, 9216, v237")
        b("v_and_b32 v238, 1, v236")
        b("v_lshl_add_u32 v237, v238, 7, v237")
        b("buffer_load_dword v239, v237, s[76:79], s75 offen")
        b("v_mov_b32 v238, 0x7f000000")
        b("v_cmp_gt_u32 vcc, 8, v236")
        b(f"s_add_u32 s75, s75, {32*9216}")
        b("v_cndmask_b32 v237, v238, v237, vcc")
        b("buffer_load_dword v240, v237, s[76:79], s75 offen")
    if opt.get("merged"):
        b("v_mov_b32 v234, 0")
        b("global_load_dword v241, v234, s[70:71] sc1")
    b(f"s_mov_b32 s82, 1")
    b(f"s_add_u32 s{sWb}, s{sWb}, 64")
    stamp(7)
    b(f"s_mov_b32 s{sCnt}, 3")
    if opt.get("stamps"): b("s_mov_b32 s90, 17")
    b("s_branch L_ffn_odd")

    def gelu_group(base, r, t, ts):
        Gr = acc(base, t, r); U = acc(base, 2+t, r); T = vT + ts*4
        Ls = []
        for i in range(4): Ls.append((f"v_mul_f32 v{T+i}, v{Gr+i}, v{Gr+i}", 1))
        for i in range(4): Ls.append((f"v_fmamk_f32 v{T+i}, v{T+i}, 0x{f2u(GK1):08x}, v{vK0}", 1))
        for i in range(4): Ls.append((f"v_mul_f32 v{T+i}, v{T+i}, v{Gr+i}", 1))
        for i in range(4): Ls.append((f"v_exp_f32 v{T+i}, v{T+i}", opt.get("trans",2)))
        for i in range(4): Ls.append((f"v_mul_f32 v{U+i}, v{Gr+i}, v{U+i}", 1))
        for i in range(4): Ls.append((f"v_add_f32 v{T+i}, 1.0, v{T+i}", 1))
        for i in range(4): Ls.append((f"v_rcp_f32 v{T+i}, v{T+i}", opt.get("trans",2)))
        for i in range(4): Ls.append((f"v_mul_f32 v{U+i}, v{U+i}, v{T+i}", 1))
        return Ls, U
    def gelu_all(base):
        Ls = []
        for r in range(4):
            P = vP + (r & 1)*4
            for t in range(2):
                g, U = gelu_group(base, r, t, t)
                Ls += g
                Ls.append((f"v_cvt_pk_bf16_f32 v{P+2*t}, v{U}, v{U+1}", 1))
                Ls.append((f"v_cvt_pk_bf16_f32 v{P+2*t+1}, v{U+2}, v{U+3}", 1))
            Ls.append((f"buffer_store_dwordx4 {v(P,4)}, v{vHo}, s[{sH}:{sH+3}], s{sHr+r} offen" + (" sc1" if opt.get("merged") else ""), 1, "vm"))
        return Ls

    def body(par):
        beta = par; base = accE if par == 0 else accO; prev = accO if par == 0 else accE
        gel = gelu_all(prev) if not opt.get("nogelu") else []
        gi = 0
        dma_steps = {0:0, 1:1, 3:2, 4:3, 6:4, 7:5, 9:6, 10:7, 12:8}
        budget = opt.get("budget", 2)
        vm_issued = 0; last_dma_idx = 0
        out = []
        carry = 0
        for bb in range(18):
            ring = bb & 1
            if bb == 17:
                out.append(f"s_waitcnt vmcnt({vm_issued - last_dma_idx}) lgkmcnt(0)")
                out.append("s_barrier")
                if par == 0 and opt.get("merged"):
                    out.append(f"s_cmp_eq_u32 s{sCnt}, 1")
                    out.append("s_cbranch_scc0 L_ffn_nosig1")
                    out.append(f"s_cmp_eq_u32 s{sw}, 0")
                    out.append("s_cbranch_scc0 L_ffn_nosig1")
                    import down2
                    tb = B()
                    tb("v_readfirstlane_b32 s73, v241")
                    tb("s_cmp_ge_u32 s73, 64")
                    tb("s_cbranch_scc1 L_ffn_zok")
                    tb("v_mov_b32 v234, 0")
                    tb.label("L_ffn_zpoll")
                    tb("global_load_dword v235, v234, s[70:71] sc1")
                    tb("s_waitcnt vmcnt(0)")
                    tb("v_readfirstlane_b32 s73, v235")
                    tb("s_cmp_ge_u32 s73, 64")
                    tb("s_cbranch_scc1 L_ffn_zok")
                    tb("s_sleep 4")
                    tb("s_branch L_ffn_zpoll")
                    tb.label("L_ffn_zok")
                    down2.signal_byte(tb, 54, 72, down2.DB_H1, 234, 235, 73, 74); out += tb.l
                    out.append("L_ffn_nosig1:")
            else:
                out.append("s_waitcnt lgkmcnt(0)")
            nb, nbeta = (bb+1, beta) if bb < 17 else (0, 1-beta)
            reads = []
            for f in range(4): reads += rd(nbeta, f, nb, 1-ring)
            dm = []
            if bb in dma_steps and not opt.get("nodma"):
                dm = dma_group(dma_steps[bb], 1-beta)
            for slot in range(16):
                out.append(mfma(base, bb, slot))
                bud = budget + carry
                carry = 0
                if slot < 8:
                    out.append(reads[slot]); bud -= 1
                elif dm:
                    k = 0
                    while dm and k < 2 and bud > 0:
                        x = dm.pop(0); out.append(x); bud -= 1; k += 1
                        if x.startswith("buffer_load"):
                            vm_issued += 1; last_dma_idx = vm_issued
                if bb == 0 and slot < 4: continue
                while gi < len(gel) and bud > 0:
                    it = gel[gi]
                    if it[1] > bud and bud < budget: break
                    out.append(it[0]); bud -= it[1]; gi += 1
                    if len(it) > 2: vm_issued += 1
                carry = min(bud, 0)
            assert not dm
        left = len(gel) - gi
        while gi < len(gel):
            out.append(gel[gi][0]); gi += 1
        out.append(f"s_add_u32 s{sWb}, s{sWb}, 64")
        for r in range(4): out.append(f"s_add_u32 s{sHr+r}, s{sHr+r}, 1024")
        return out, left
    def wd_prefetch(par):
        o = []
        o.append(f"s_sub_u32 s75, s82, 1")
        o.append(f"s_cmp_eq_u32 s75, s{sw}")
        o.append(f"s_cbranch_scc0 L_ffn_nopf{par}")
        o.append("s_load_dwordx2 s[76:77], s[0:1], 56")
        o.append(f"s_mul_i32 s75, s{sx}, 6")
        o.append(f"s_lshr_b32 s80, s{sj}, 2")
        o.append("s_add_u32 s75, s75, s80")
        o.append("s_lshr_b32 s75, s75, 3")
        o.append("s_mul_i32 s75, s75, 768")
        o.append("s_lshl_b32 s80, s80, 7")
        o.append("s_add_u32 s75, s75, s80")
        o.append(f"s_lshl_b32 s80, s{sw}, 5")
        o.append("s_add_u32 s75, s75, s80")
        o.append("s_mul_i32 s75, s75, 1152")
        o.append(f"s_and_b32 s80, s{sj}, 3")
        o.append("s_mul_i32 s80, s80, 288")
        o.append("s_add_u32 s75, s75, s80")
        o.append("v_and_b32 v236, 63, v0")
        o.append("v_lshrrev_b32 v237, 2, v236")
        o.append("v_mul_u32_u24 v237, 1152, v237")
        o.append("v_and_b32 v236, 3, v236")
        o.append("v_mul_u32_u24 v236, 96, v236")
        o.append("v_add_u32 v236, v236, v237")
        o.append("s_waitcnt lgkmcnt(0)")
        o.append("s_and_b32 s77, s77, 0xffff")
        o.append("s_mov_b32 s78, 5308416")
        o.append("s_mov_b32 s79, 0x00020000")
        o.append("buffer_load_dword v237, v236, s[76:79], s75 offen")
        o.append(f"s_add_u32 s75, s75, {16*1152}")
        o.append("buffer_load_dword v238, v236, s[76:79], s75 offen")
        o.append(f"L_ffn_nopf{par}:")
        o.append("s_add_u32 s82, s82, 1")
        return o
    def pstamp():
        if opt.get("stamps"):
            b("s_memtime s[92:93]"); b("s_waitcnt lgkmcnt(0)")
            b("s_mov_b32 m0, s90"); b("s_nop 1"); b("v_writelane_b32 v254, s92, m0"); b("s_add_u32 s90, s90, 1")

    b(".p2align 6")
    b.label("L_ffn_even")
    e, left_e = body(0)
    if opt.get("merged") and opt.get("pf", 1): b.ext(wd_prefetch(0))
    b.ext(e)
    pstamp()
    b.label("L_ffn_odd")
    o, left_o = body(1)
    if opt.get("merged") and opt.get("pf", 1): b.ext(wd_prefetch(1))
    b.ext(o)
    pstamp()
    b(f"s_sub_u32 s{sCnt}, s{sCnt}, 1")
    b(f"s_cmp_lg_u32 s{sCnt}, 0")
    b("s_cbranch_scc1 L_ffn_even")
    if opt.get("merged"):
        import down2
        down2.gen_down_pre(b, opt)
    b("s_nop 7")
    b("s_nop 7")
    for it in gelu_all(accO):
        b(it[0])
    if not opt.get("merged"): b("s_waitcnt vmcnt(0)")

def timing_tail(b, opt):
    b("s_memtime s[64:65]")
    b("s_memrealtime s[66:67]")
    b("s_waitcnt lgkmcnt(0)")
    b("s_mov_b32 s68, s64")
    b("s_sub_u32 s64, s64, s60")
    b("s_sub_u32 s66, s66, s62")
    b("v_mov_b32 v4, s64"); b("v_mov_b32 v5, s66")
    if opt.get("stamps"):
        b("v_writelane_b32 v13, s60, 6")
        b("v_writelane_b32 v13, s68, 8")
        b("s_lshl_b32 s3, s2, 6")
        b("s_add_u32 s3, s3, 0x4100000")
        b("v_lshlrev_b32 v14, 2, v0")
        b("v_add_u32 v14, s3, v14")
        b("v_cmp_gt_u32 vcc, 16, v0")
        b("s_and_saveexec_b64 s[70:71], vcc")
        b("s_cbranch_execz L_skipst")
        b("global_store_dword v14, v13, s[54:55]")
        b.label("L_skipst")
        b("s_mov_b64 exec, s[70:71]")
    b("s_lshl_b32 s3, s2, 3")
    b(f"s_add_u32 s3, s3, 0x4000000")
    b("v_mov_b32 v3, s3")
    b("v_cmp_eq_u32 vcc, 0, v0")
    b("s_and_saveexec_b64 s[70:71], vcc")
    b("s_cbranch_execz L_exit")
    b("global_store_dwordx2 v3, v[4:5], s[54:55]")

if __name__ == "__main__":
    import sys
    opt = {}
    for x in sys.argv[2:]:
        k, _, val = x.partition("=")
        opt[k] = int(val) if val else 1
    name = "ffnup_kernel"
    b = B()
    b("s_cmp_ge_u32 s2, 256")
    b("s_cbranch_scc1 L_exit")
    b("s_lshr_b32 s3, s2, 3")
    b("s_cmp_ge_u32 s3, 24")
    b("s_cbranch_scc1 L_exit")
    if opt.get("time"):
        b("s_memtime s[60:61]")
        b("s_memrealtime s[62:63]")
    gen_ffn_up(b, opt)
    if opt.get("time"): timing_tail(b, opt)
    b.label("L_exit")
    b("s_endpgm")
    txt = f"; @launch kernel={name} grid=(256,1,1) block=(256,1,1) lds=163840\n"
    txt += '.amdgcn_target "amdgcn-amd-amdhsa--gfx950"\n.text\n' + kernel_header(name) + b.text()
    txt += '.section .rodata,"a"\n' + kernel_desc(name, 256, 256)
    open(sys.argv[1], "w").write(txt)
```

```python
import sys
from asmlib import *
import ffn_up, down2, attn
opt = {"merged": 1}
for x in sys.argv[2:]:
    k, _, val = x.partition("=")
    opt[k] = int(val) if val else 1
NAME = "gated_mix__linear_kernel_hedgehog__geglu_ffn__prompt_kernel"
b = B()
b("s_cmp_ge_u32 s2, 256"); b("s_cbranch_scc1 L_exit")
if opt.get("time"): b("s_memtime s[94:95]"); b("s_memrealtime s[100:101]")
if opt.get("touch"):
    CH = ffn_up.P_OFF + down2.P_SIZE
    b("s_load_dwordx4 s[8:11], s[0:1], 0"); b("s_load_dwordx4 s[12:15], s[0:1], 16"); b("s_load_dwordx4 s[16:19], s[0:1], 40")
    b("s_load_dwordx4 s[20:23], s[0:1], 56"); b("s_load_dwordx2 s[24:25], s[0:1], 72"); b("s_load_dwordx2 s[26:27], s[0:1], 88")
    b("v_and_b32 v1, 63, v0"); b("v_lshlrev_b32 v1, %d, v1" % opt.get("tshift", 21))
    b("s_waitcnt lgkmcnt(0)")
    bufs = [(8, 2359296), (10, 1990656), (14, 663552), (16, 5308416), (18, 5308416), (20, 5308416), (24, 2359296), (26, CH)]
    for k, (sr, sz) in enumerate(bufs):
        srd(b, 28, sr, sz)
        b(f"buffer_load_dword v{236+k}, v1, s[28:31], 0 offen")
b("s_lshr_b32 s3, s2, 3"); b("s_cmp_ge_u32 s3, 24"); b("s_cbranch_scc1 L_attn")
ffn_up.gen_ffn_up(b, opt)
if opt.get("time"):
    b("s_memtime s[96:97]"); b("s_waitcnt lgkmcnt(0)"); b("v_writelane_b32 v254, s96, 10")
down2.gen_down(b, opt)
if opt.get("time"): b("v_mov_b32 v255, v254")
b("s_branch L_reduce")
b.label("L_attn")
attn.gen_attn(b, opt)
b.label("L_reduce")
down2.gen_reduce(b, opt)
if opt.get("time"):
    b("s_waitcnt vmcnt(0)")
    b("s_memtime s[96:97]"); b("s_memrealtime s[98:99]"); b("s_waitcnt lgkmcnt(0)")
    b("s_lshr_b32 s3, s2, 3"); b("s_cmp_ge_u32 s3, 24"); b("s_cbranch_scc1 L_t_attn")
    b("v_writelane_b32 v255, s94, 0"); b("v_writelane_b32 v255, s96, 9")
    b("s_sub_u32 s98, s98, s100"); b("v_writelane_b32 v255, s98, 11"); b("v_writelane_b32 v255, s100, 12")
    b("s_branch L_t_st")
    b.label("L_t_attn")
    b("v_writelane_b32 v255, s94, 0"); b("v_writelane_b32 v255, s96, 9")
    b.label("L_t_st")
    b("s_lshl_b32 s3, s2, 7"); b("s_add_u32 s3, s3, 0x4300000")
    b("v_lshlrev_b32 v14, 2, v0"); b("v_add_u32 v14, s3, v14")
    b("v_cmp_gt_u32 vcc, 32, v0"); b("s_and_saveexec_b64 s[80:81], vcc"); b("s_cbranch_execz L_exit")
    b("global_store_dword v14, v255, s[54:55]")
b.label("L_exit"); b("s_endpgm")
txt = open("header.txt").read() if False else ""
hdr = open("gated_mix__linear_kernel_hedgehog__geglu_ffn__prompt.s.ref").read().split("; Override launch")[0]
txt = hdr + "; @launch grid=(256,1,1) block=(256,1,1) lds=163840\n"
txt += '.amdgcn_target "amdgcn-amd-amdhsa--gfx950"\n.text\n' + kernel_header(NAME) + b.text() + attn.attn_table() + ".p2align 2\n" + down2.down_table()
txt += '.section .rodata,"a"\n' + kernel_desc(NAME, 256, 256)
open(sys.argv[1], "w").write(txt)
```
